```python
import torch

def _softmax(x, axis=-1):
    return torch.softmax(x, dim=axis)
def _gelu(x):
    return torch.nn.functional.gelu(x, approximate="tanh")
def _silu(x):
    return torch.nn.functional.silu(x)
def _sigmoid(x):
    return torch.sigmoid(x)
def _layernorm(x, axis=-1, eps=1e-5):
    m = x.mean(dim=axis, keepdim=True)
    v = x.var(dim=axis, keepdim=True, unbiased=False)
    return (x - m) / torch.sqrt(v + eps)
def _scatter_add(tgt, idx, src, axis=0):
    return tgt.clone().index_add_(axis, idx, src)
def _segment_sum(src, seg, n):
    out = torch.zeros((n,) + src.shape[1:], dtype=src.dtype)
    return out.index_add_(0, seg, src)
def _pad(x, pw):
    flat = tuple(v for pair in reversed(pw) for v in pair)
    return torch.nn.functional.pad(x, flat)

kernel_name = 'sequential_preLN__compressed_kv_cla__mixer_token_mlp__prompt'

def setup_inputs():

    _w = (lambda a: (lambda t: t.to(torch.bfloat16) if t.is_floating_point() else t)(torch.as_tensor(a)))
    def _A_setup():
        B, H, Sq, Sk, D, M = 1, 32, 2048, 2048, 128, 640
        Dc = 4 * D
        return {
            "x": _w((lambda *s: torch.randn(*s, dtype=torch.bfloat16) * 0.05)(B, Sq, M)),
            "c_kv": _w((lambda *s: torch.randn(*s, dtype=torch.bfloat16) * 0.2)(B, Sk, Dc)),
            "w_q": _w((lambda *s: torch.randn(*s, dtype=torch.bfloat16) * 3.2)(M, H, D) * (M ** -0.5)),
            "w_uk": _w((lambda *s: torch.randn(*s, dtype=torch.bfloat16) * 6.4)(Dc, H, D) * (Dc ** -0.5)),
            "w_uv": _w((lambda *s: torch.randn(*s, dtype=torch.bfloat16) * 0.2)(Dc, H, D) * (Dc ** -0.5)),
            "w_o": _w((lambda *s: torch.randn(*s, dtype=torch.bfloat16) * 0.2)(H, D, M) * ((H * D) ** -0.5)),
        }
    _A_in = _A_setup()

    def _B_setup():
        B, S, D, F = 1, 2048, 640, 1728
        return {
            "x": _w((lambda *s: torch.randn(*s, dtype=torch.bfloat16) * 0.05)(B, S, D)),
            "w1": _w((lambda *s: torch.randn(*s, dtype=torch.bfloat16) * 0.4)(S, F) * (S ** -0.5)),
            "b1": _w((lambda *s: torch.randn(*s, dtype=torch.bfloat16) * 3.2)(F) * 0.02),
            "w2": _w((lambda *s: torch.randn(*s, dtype=torch.bfloat16) * 0.2)(F, S) * (F ** -0.5)),
            "b2": _w((lambda *s: torch.randn(*s, dtype=torch.bfloat16) * 0.8)(S) * 0.02),
        }
    _B_in = _B_setup()

    return {
        "A_x": _A_in["x"],
        "A_c_kv": _A_in["c_kv"],
        "A_w_q": _A_in["w_q"],
        "A_w_uk": _A_in["w_uk"],
        "A_w_uv": _A_in["w_uv"],
        "A_w_o": _A_in["w_o"],
        "B_x": _B_in["x"],
        "B_w1": _B_in["w1"],
        "B_b1": _B_in["b1"],
        "B_w2": _B_in["w2"],
        "B_b2": _B_in["b2"],
    }

def reference(A_x, A_c_kv, A_w_q, A_w_uk, A_w_uv, A_w_o, B_x, B_w1, B_b1, B_w2, B_b2):
    def _A_ref(x, c_kv, w_q, w_uk, w_uv, w_o):
        B, Sq, M = x.shape[0], x.shape[1], x.shape[2]
        Sk = c_kv.shape[1]
        H, D = w_q.shape[1], w_q.shape[2]
        q = torch.einsum("bqm,mhd->bhqd", x, w_q)
        k = torch.einsum("bkc,chd->bhkd", c_kv, w_uk)
        v = torch.einsum("bkc,chd->bhkd", c_kv, w_uv)
        scores = torch.einsum("bhqd,bhkd->bhqk", q, k) * (D ** -0.5)
        off = Sk - Sq
        qi = torch.arange(Sq)[:, None]
        kj = torch.arange(Sk)[None, :]
        cmask = kj <= (qi + off)
        scores = torch.where(cmask[None, None], scores, -1e9)
        p = _softmax(scores, axis=-1)
        ctx = torch.einsum("bhqk,bhkd->bhqd", p, v)
        return torch.einsum("bhqd,hdm->bqm", ctx, w_o)

    def _B_ref(x, w1, b1, w2, b2):
        B, S, D = x.shape
        h = _layernorm(x, axis=-1)
        u = torch.einsum("bsd,sf->bdf", h, w1) + b1
        u = _gelu(u)
        y = torch.einsum("bdf,fs->bds", u, w2) + b2
        return (lambda x, *d: x.permute(*d))(y, 0, 2, 1)

    x = A_x
    h = x + _A_ref(_layernorm(x, axis=-1), A_c_kv, A_w_q, A_w_uk, A_w_uv, A_w_o)
    h2 = h + _B_ref(_layernorm(h, axis=-1), B_w1, B_b1, B_w2, B_b2)
    return h2
```

```python
WS_XN   = 0
WS_K    = 4 << 20
WS_VT   = 24 << 20
WS_CTX  = 44 << 20
WS_PART = 64 << 20
WS_H    = 112 << 20
WS_HN   = 116 << 20
WS_G    = 120 << 20

class Asm:
    def __init__(self):
        self.lines = []
    def __call__(self, s):
        if isinstance(s, (list, tuple)):
            for x in s: self(x)
        else:
            self.lines.append("    " + s if not s.endswith(":") else s)
    def text(self):
        return "\n".join(self.lines) + "\n"

def srd(a, sd, ptr, nbytes, off=0):
    if off:
        a(f"s_add_u32 s{sd}, s{ptr}, {off}")
        a(f"s_addc_u32 s{sd+1}, s{ptr+1}, 0")
    else:
        a(f"s_mov_b32 s{sd}, s{ptr}")
        a(f"s_mov_b32 s{sd+1}, s{ptr+1}")
    a(f"s_mov_b32 s{sd+2}, {nbytes}")
    a(f"s_mov_b32 s{sd+3}, 0x00020000")

def interleave(mf, fill, lead=1):
    out = []
    n = len(mf)
    if n == 0: return list(fill)
    gaps = n - lead + 1 if n >= lead else 1
    per = [len(fill) // gaps + (1 if i < len(fill) % gaps else 0) for i in range(gaps)]
    fi = 0
    for i, m in enumerate(mf):
        out.append(m)
        g = i - (lead - 1)
        if g >= 0:
            out += fill[fi:fi + per[g]]; fi += per[g]
    out += fill[fi:]
    return out

class Op:
    def __init__(self, kind, T, BK, ld, srd, mf, perm='nat'):
        self.kind, self.T, self.BK, self.ld, self.srd, self.mf, self.perm = kind, T, BK, ld, srd, mf, perm
        self.bytes = T * BK * 2
        self.npieces = self.bytes // 1024
        assert self.bytes % 1024 == 0
        self.rb = BK * 2 if kind == 'kc' else T * 2
        self.cpr = self.rb // 16
        self.kstep = ld * BK if kind == 'tr' else BK * 2

class Gemm:
    def __init__(self, a, X, W, WM, WN, WK, nstage, nkt, vbase, sbase, kgroup=1, lds_base=0):
        self.a, self.X, self.W = a, X, W
        self.WM, self.WN, self.WK, self.S, self.nkt = WM, WN, WK, nstage, nkt
        self.NW = WM * WN * WK
        self.mf = X.mf
        self.KS = 16 if self.mf == 32 else 32
        self.BK = X.BK
        self.stage = X.bytes + W.bytes
        self.lds_base = lds_base
        X.lds, W.lds = 0, X.bytes
        self.mt = X.T // WM // self.mf
        self.nt = W.T // WN // self.mf
        self.nks = self.BK // WK // self.KS
        self.kg = kgroup
        assert self.nks % kgroup == 0
        for o in (X, W):
            assert o.npieces % self.NW == 0, (o.npieces, self.NW)
            o.ppw = o.npieces // self.NW
        self.P = X.ppw + W.ppw
        v = vbase
        for o in (X, W):
            o.voff = v; v += o.ppw
        for o, nt in ((X, self.mt), (W, self.nt)):
            if o.kind == 'kc': o.nb = self.nks
            else:
                o.swz = (o.rb % 128 == 0)
                o.nb = min(4, nt) if o.swz else 1
            o.vb = v; v += o.nb
            o.vc = v; v += o.nb
        v = (v + 3) // 4 * 4
        self.fsz = (self.mt + self.nt) * 4 * kgroup
        self.vfrag = v; v += 2 * self.fsz
        self.vend = v
        s = sbase
        for o in (X, W):
            o.swave = s; o.skoff = s + 1; s += 2
        self.send = s

    def setup(self, vtid, swave, vt):
        a = self.a
        lane, t1, t2, t3, t4 = vt, vt + 1, vt + 2, vt + 3, vt + 4
        a(f"v_and_b32 v{lane}, 63, v{vtid}")
        for o in (self.X, self.W):
            a(f"s_mul_i32 s{o.swave}, s{swave}, {o.ppw * 1024}")
            a(f"s_lshr_b32 s{self.send}, s{o.swave}, 4")
            for p in range(o.ppw):
                a(f"v_add_u32 v{t1}, s{self.send}, v{lane}")
                if p: a(f"v_add_u32 v{t1}, {p * 64}, v{t1}")
                c = o.cpr
                if c & (c - 1) == 0:
                    sh = c.bit_length() - 1
                    a(f"v_lshrrev_b32 v{t2}, {sh}, v{t1}")
                    a(f"v_and_b32 v{t3}, {c - 1}, v{t1}")
                else:
                    magic = (65536 + c - 1) // c
                    assert all((L * magic) >> 16 == L // c for L in range(o.npieces * 64))
                    a(f"v_mul_u32_u24 v{t2}, {magic}, v{t1}")
                    a(f"v_lshrrev_b32 v{t2}, 16, v{t2}")
                    a(f"v_mul_u32_u24 v{t3}, {c}, v{t2}")
                    a(f"v_sub_u32 v{t3}, v{t1}, v{t3}")
                if o.kind == 'kc':
                    sh = {4: 2, 8: 1, 16: 0}[c]
                    a(f"v_lshrrev_b32 v{t4}, {sh}, v{t2}")
                    a(f"v_and_b32 v{t4}, {c - 1}, v{t4}")
                    a(f"v_xor_b32 v{t3}, v{t3}, v{t4}")
                elif o.swz:
                    if self.mf == 32:
                        a(f"v_and_b32 v{t4}, 3, v{t2}")
                        a(f"v_lshlrev_b32 v{t4}, 2, v{t4}")
                    else:
                        assert o.rb == 128
                        a(f"v_and_b32 v{t4}, 6, v{t2}")
                    a(f"v_xor_b32 v{t3}, v{t3}, v{t4}")
                a(f"s_mov_b32 s{self.send+1}, {o.ld}")
                a(f"v_mul_lo_u32 v{t2}, v{t2}, s{self.send+1}")
                a(f"v_lshl_add_u32 v{o.voff + p}, v{t3}, 4, v{t2}")

    def setup_reads(self, vtid, swm, swn, swk, vt):
        a = self.a
        lane, t1, t2, t3, t4 = vt, vt + 1, vt + 2, vt + 3, vt + 4
        st = self.send
        a(f"v_and_b32 v{lane}, 63, v{vtid}")
        for o, sw, nt in ((self.X, swm, self.mt), (self.W, swn, self.nt)):
            mf = self.mf
            sh = 5 if mf == 32 else 4
            if o.kind == 'kc':
                c = o.cpr
                a(f"v_and_b32 v{t1}, {mf - 1}, v{lane}")
                a(f"v_lshrrev_b32 v{t2}, {sh}, v{lane}")
                if swk is not None:
                    a(f"s_mul_i32 s{st}, s{swk}, {self.nks * self.KS // 8}")
                    a(f"v_add_u32 v{t2}, s{st}, v{t2}")
                a(f"v_lshrrev_b32 v{t3}, {({4: 2, 8: 1, 16: 0}[c])}, v{t1}")
                a(f"v_and_b32 v{t3}, {c - 1}, v{t3}")
                if sw is not None:
                    a(f"s_mul_i32 s{st}, s{sw}, {nt * mf}")
                    a(f"v_add_u32 v{t1}, s{st}, v{t1}")
                a(f"v_mul_u32_u24 v{t1}, {o.rb}, v{t1}")
                a(f"v_add_u32 v{t1}, {o.lds + self.lds_base}, v{t1}")
                for ks in range(self.nks):
                    a(f"v_add_u32 v{t4}, {ks * self.KS // 8}, v{t2}")
                    a(f"v_xor_b32 v{t4}, v{t4}, v{t3}")
                    a(f"v_lshl_add_u32 v{o.vb + ks}, v{t4}, 4, v{t1}")
            else:
                a(f"v_bfe_u32 v{t1}, v{lane}, 2, 2")
                a(f"v_lshrrev_b32 v{t2}, {sh}, v{lane}")
                mul = 4 if o.perm == 'perm' else 8
                a(f"v_mad_u32_u24 v{t2}, v{t2}, {mul}, v{t1}")
                if swk is not None:
                    a(f"s_mul_i32 s{st}, s{swk}, {self.nks * self.KS}")
                    a(f"v_add_u32 v{t2}, s{st}, v{t2}")
                a(f"v_mul_u32_u24 v{t3}, {o.rb}, v{t2}")
                a(f"v_and_b32 v{t4}, 3, v{lane}")
                a(f"v_lshl_add_u32 v{t3}, v{t4}, 3, v{t3}")
                if mf == 32:
                    a(f"v_bfe_u32 v{t4}, v{lane}, 4, 1")
                    a(f"v_lshl_add_u32 v{t3}, v{t4}, 5, v{t3}")
                a(f"v_add_u32 v{t3}, {o.lds + self.lds_base}, v{t3}")
                ub = mf * 2
                if o.swz:
                    assert sw is None or nt % 4 == 0 or True
                    if mf == 32: a(f"v_mov_b32 v{t4}, v{t1}")
                    else: a(f"v_bfe_u32 v{t4}, v{t2}, 1, 2")
                    for j in range(o.nb):
                        if sw is not None:
                            a(f"s_mul_i32 s{st}, s{sw}, {nt}")
                            a(f"s_add_u32 s{st}, s{st}, {j}")
                            a(f"v_xor_b32 v{t1}, s{st}, v{t4}")
                        else:
                            a(f"v_xor_b32 v{t1}, {j}, v{t4}")
                        a(f"v_mad_u32_u24 v{o.vb + j}, v{t1}, {ub}, v{t3}")
                else:
                    if sw is not None:
                        a(f"s_mul_i32 s{st}, s{sw}, {nt * ub}")
                        a(f"v_add_u32 v{t3}, s{st}, v{t3}")
                    a(f"v_mov_b32 v{o.vb}, v{t3}")

    def dma(self, kt):
        out = []
        slot = (kt % self.S) * self.stage + self.lds_base
        for o in (self.X, self.W):
            for p in range(o.ppw):
                out.append(f"s_add_u32 m0, s{o.swave}, {slot + o.lds + p * 1024}")
                if p == 0 or True: out.append("s_nop 0")
                out.append(f"buffer_load_dwordx4 v{o.voff + p}, s[{o.srd}:{o.srd+3}], s{o.skoff} offen lds")
            out.append(f"s_add_u32 s{o.skoff}, s{o.skoff}, {o.kstep}")
        return out

    def setcur(self, kt):
        out = []
        slot = (kt % self.S) * self.stage
        for o in (self.X, self.W):
            for j in range(o.nb):
                out.append(f"v_add_u32 v{o.vc + j}, {slot}, v{o.vb + j}")
        return out

    def fragreg(self, buf, which, t, kk):
        base = self.vfrag + buf * self.fsz + kk * (self.mt + self.nt) * 4
        return base + (t if which == 0 else self.mt + t) * 4

    def reads(self, buf, g):
        out = []
        for kk in range(self.kg):
            ks = g * self.kg + kk
            for which, o, nt in ((0, self.X, self.mt), (1, self.W, self.nt)):
                for t in range(nt):
                    r = self.fragreg(buf, which, t, kk)
                    if o.kind == 'kc':
                        out.append(f"ds_read_b128 v[{r}:{r+3}], v{o.vc + ks} offset:{t * self.mf * o.rb}")
                    else:
                        ub = self.mf * 2
                        jstep = (self.KS // 2) if o.perm == 'perm' else 4
                        for j in range(2):
                            row = ks * self.KS + j * jstep
                            if o.swz: vb, co = o.vc + (t & 3), (t & ~3) * ub
                            else: vb, co = o.vc, t * ub
                            out.append(f"ds_read_b64_tr_b16 v[{r+2*j}:{r+2*j+1}], v{vb} offset:{row * o.rb + co}")
        return out

    def mfmas(self, buf, acc, first, swap):
        out = []
        op = "v_mfma_f32_32x32x16_bf16" if self.mf == 32 else "v_mfma_f32_16x16x32_bf16"
        for kk in range(self.kg):
            for i in range(self.mt):
                for j in range(self.nt):
                    x = self.fragreg(buf, 0, i, kk); w = self.fragreg(buf, 1, j, kk)
                    A, B = (w, x) if swap else (x, w)
                    c = "0" if (first and kk == 0) else acc(i, j)
                    out.append(f"{op} {acc(i, j)}, v[{A}:{A+3}], v[{B}:{B+3}], {c}")
        return out

    def prologue_dma(self):
        for kt in range(min(self.S, self.nkt)):
            self.a(self.dma(kt))

    def run(self, acc, swap, extra_vm=0, tail_fill=None, extra=None):
        a = self.a
        ng = self.nks // self.kg
        S, P, nkt = self.S, self.P, self.nkt
        inflight = min(S, nkt)
        nx = len(extra) if extra else 0
        a(f"s_waitcnt vmcnt({min(63, (inflight - 1) * P)})")
        a("s_barrier")
        a(self.setcur(0))
        a(self.reads(0, 0))
        buf = 0
        for kt in range(nkt):
            for g in range(ng):
                a("s_waitcnt lgkmcnt(0)")
                fill = []
                if g < ng - 1:
                    fill = self.reads(buf ^ 1, g + 1)
                elif kt < nkt - 1:
                    issued = min(nkt + nx, kt + S)
                    rem = issued - (kt + 2)
                    a(f"s_waitcnt vmcnt({min(63, rem * P)})")
                    a("s_barrier")
                    fill = self.setcur(kt + 1) + self.reads(buf ^ 1, 0)
                    if kt + S < nkt: fill += self.dma(kt + S)
                    elif kt + S < nkt + nx: fill += extra[kt + S - nkt]
                elif tail_fill: fill = tail_fill
                a(interleave(self.mfmas(buf, acc, kt == 0 and g == 0, swap), fill))
                buf ^= 1
```

```python
from core import *

def wave_sum(a, v, t, sdst):
    for m in ("quad_perm:[1,0,3,2]", "quad_perm:[2,3,0,1]", "row_half_mirror", "row_mirror"):
        a("s_nop 1")
        a(f"v_add_f32_dpp v{v}, v{v}, v{v} {m} row_mask:0xf bank_mask:0xf")
    a("s_nop 1")
    a(f"v_add_f32_dpp v{v}, v{v}, v{v} row_bcast:15 row_mask:0xa bank_mask:0xf")
    a("s_nop 1")
    a(f"v_add_f32_dpp v{v}, v{v}, v{v} row_bcast:31 row_mask:0xc bank_mask:0xf")
    a("s_nop 1")
    a(f"v_readlane_b32 s{sdst}, v{v}, 63")

def layernorm10(a, e, t, st):
    a(f"v_add_f32 v{t}, v{e}, v{e+1}")
    for i in range(2, 10): a(f"v_add_f32 v{t}, v{t}, v{e+i}")
    wave_sum(a, t, t + 1, st)
    a("s_nop 1")
    a(f"v_mov_b32 v{t}, s{st}")
    a(f"v_mul_f32 v{t}, {1.0/640.0!r}, v{t}")
    for i in range(10): a(f"v_sub_f32 v{e+i}, v{e+i}, v{t}")
    a(f"v_mul_f32 v{t}, v{e}, v{e}")
    for i in range(1, 10): a(f"v_fmac_f32 v{t}, v{e+i}, v{e+i}")
    wave_sum(a, t, t + 1, st)
    a("s_nop 1")
    a(f"v_mov_b32 v{t}, s{st}")
    a(f"v_mov_b32 v{t+1}, 0x3727c5ac")
    a(f"v_fmac_f32 v{t+1}, {1.0/640.0!r}, v{t}")
    a(f"v_rsq_f32 v{t+1}, v{t+1}")
    a("s_nop 0")
    for i in range(10): a(f"v_mul_f32 v{e+i}, v{e+i}, v{t+1}")

def unpack5(a, src, e):
    for i in range(5):
        a(f"v_lshlrev_b32 v{e+2*i}, 16, v{src+i}")
        a(f"v_and_b32 v{e+2*i+1}, 0xffff0000, v{src+i}")

def header(a, name):
    a.lines.append(f".globl {name}\n.p2align 8\n.type {name},@function")
    a(f"{name}:")

def desc(name, vgpr, accum, sgpr=102):
    return f""".amdhsa_kernel {name}
  .amdhsa_next_free_vgpr {vgpr}
  .amdhsa_next_free_sgpr {sgpr}
  .amdhsa_accum_offset {accum}
  .amdhsa_group_segment_fixed_size 0
  .amdhsa_kernarg_size 112
  .amdhsa_user_sgpr_count 2
  .amdhsa_user_sgpr_kernarg_segment_ptr 1
  .amdhsa_system_sgpr_workgroup_id_x 1
.end_amdhsa_kernel
"""

def gen_kv():
    a = Asm(); name = "kv_kernel"
    header(a, name)
    a("s_cmp_ge_u32 s2, 256"); a("s_cbranch_scc1 Lkv_end")
    a("s_load_dwordx4 s[4:7], s[0:1], 0")
    a("s_load_dwordx4 s[8:11], s[0:1], 24")
    a("s_load_dwordx2 s[12:13], s[0:1], 104")
    a("v_lshrrev_b32 v1, 6, v0"); a("s_nop 0"); a("v_readfirstlane_b32 s40, v1")
    X = Op('kc', 256, 32, 1024, 16, 32); W = Op('tr', 256, 32, 8192, 20, 32, 'nat')
    g = Gemm(a, X, W, 2, 2, 1, 4, 16, vbase=8, sbase=48)
    a("s_and_b32 s41, s2, 7")
    a("s_lshr_b32 s42, s2, 3")
    a("s_and_b32 s43, s42, 7")
    a("s_lshr_b32 s42, s42, 3")
    a("s_lshr_b32 s44, s42, 1")
    a("s_and_b32 s42, s42, 1")
    a("s_lshl_b32 s41, s41, 1"); a("s_add_u32 s41, s41, s42")
    a("s_lshr_b32 s45, s40, 1")
    a("s_and_b32 s46, s40, 1")
    a(f"s_lshl_b32 s{X.skoff}, s43, 18")
    a(f"s_lshl_b32 s{W.skoff}, s41, 9")
    g.setup(0, 40, 1)
    a("s_waitcnt lgkmcnt(0)")
    srd(a, 16, 6, 2048 * 512 * 2)
    a("s_cmp_eq_u32 s44, 0")
    a("s_cselect_b32 s20, s8, s10"); a("s_cselect_b32 s21, s9, s11")
    a(f"s_mov_b32 s22, {512*4096*2}"); a("s_mov_b32 s23, 0x00020000")
    g.prologue_dma()
    srd(a, 28, 4, 2048 * 640 * 2)
    srd(a, 32, 12, 2048 * 640 * 2, WS_XN)
    ve = g.vfrag
    a("v_and_b32 v1, 63, v0"); a("v_lshlrev_b32 v1, 2, v1")
    a("s_lshl_b32 s47, s2, 3"); a("s_lshl_b32 s60, s40, 1"); a("s_add_u32 s47, s47, s60"); a("s_mul_i32 s47, s47, 1280")
    for r in range(2):
        for i in range(5):
            a(f"buffer_load_dword v{ve+r*5+i}, v1, s[28:31], s47 offen offset:{r*1280+i*256}")
    g.setup_reads(0, 45, 46, None, 2)
    a("s_waitcnt vmcnt(0)")
    for r in range(2):
        e = ve + 12
        unpack5(a, ve + r * 5, e)
        layernorm10(a, e, 2, 60)
        for i in range(5):
            a(f"v_cvt_pk_bf16_f32 v{ve+r*5+i}, v{e+2*i}, v{e+2*i+1}")
            a(f"buffer_store_dword v{ve+r*5+i}, v1, s[32:35], s47 offen offset:{r*1280+i*256}")
    a("s_waitcnt vmcnt(0)")
    acc = lambda i, j: f"a[{(i*4+j)*16}:{(i*4+j)*16+15}]"
    a("s_cmp_eq_u32 s44, 1"); a("s_cbranch_scc1 Lkv_v")
    for isv in (0, 1):
        if isv: a("Lkv_v:")
        g.run(acc, swap=(isv == 0))
        srd(a, 24, 12, 2048 * 4096 * 2, WS_VT if isv else WS_K)
        pitch = 4096 if isv else 8192
        a("v_and_b32 v1, 31, v0"); a(f"v_mul_u32_u24 v1, {pitch}, v1")
        a("v_bfe_u32 v2, v0, 5, 1"); a("v_lshl_add_u32 v1, v2, 4, v1")
        a("s_lshl_b32 s60, s43, 8"); a("s_lshl_b32 s61, s45, 7"); a("s_add_u32 s60, s60, s61")
        a("s_lshl_b32 s61, s41, 8"); a("s_lshl_b32 s62, s46, 7"); a("s_add_u32 s61, s61, s62")
        rowS, colS = (61, 60) if isv else (60, 61)
        a(f"s_mul_i32 s62, s{rowS}, {pitch}"); a(f"s_lshl_b32 s63, s{colS}, 1"); a("s_add_u32 s62, s62, s63")
        a("s_nop 7"); a("s_nop 7")
        tb = 8
        cnt = 0
        for rt in range(4):
            for ct in range(4):
                i, j = (ct, rt) if isv else (rt, ct)
                b = (i * 4 + j) * 16
                for t in range(2):
                    r = tb + (cnt % 4) * 12; cnt += 1
                    for e in range(8): a(f"v_accvgpr_read_b32 v{r+4+e}, a{b+8*t+e}")
                    for e in range(4): a(f"v_cvt_pk_bf16_f32 v{r+e}, v{r+4+2*e}, v{r+5+2*e}")
                    a(f"buffer_store_dwordx4 v[{r}:{r+3}], v1, s[24:27], s62 offen offset:{ct*64+t*32}")
            a(f"s_add_u32 s62, s62, {32*pitch}")
        a("s_endpgm")
    a("Lkv_end:"); a("s_endpgm")
    vg = (g.vend + 3) // 4 * 4
    return a.text(), desc(name, vg + 256, vg), f"; @launch kernel={name} grid=(256,1,1) block=(256,1,1) lds={g.S*g.stage}"
```

```python
import sys, importlib
sys.path.insert(0, 'gen')
from core import *
import kA
NAME = "sequential_preLN__compressed_kv_cla__mixer_token_mlp__prompt"
def build(gens, path):
    parts = [g() for g in gens]
    ref = open(f"cdna_kernels/{NAME}.s.ref").read().split("\n")
    hdr = [l for l in ref if l.startswith(";") and "@launch" not in l and "Override" not in l and "grid=ceil" not in l]
    out = "\n".join(hdr) + "\n" + "\n".join(p[2] for p in parts) + "\n"
    out += '.amdgcn_target "amdgcn-amd-amdhsa--gfx950"\n.text\n'
    out += "".join(p[0] for p in parts)
    out += '.section .rodata,"a"\n' + "".join(".p2align 6\n" + p[1] for p in parts)
    open(path, "w").write(out)
if __name__ == "__main__":
    gens = [kA.gen_kv]
    for m, f in (("kB", "gen_attn"), ("kC", "gen_oproj"), ("kC", "gen_ln2"), ("kE", "gen_mlp1"), ("kE", "gen_mlp2")):
        try:
            gens.append(getattr(importlib.import_module(m), f))
        except ImportError as e:
            print("skip", m, e)
    build(gens, sys.argv[1] if len(sys.argv) > 1 else f"cdna_kernels/{NAME}.s")
```

```python
WS_XN   = 0
WS_K    = 4 << 20
WS_VT   = 24 << 20
WS_CTX  = 44 << 20
WS_PART = 64 << 20
WS_H    = 112 << 20
WS_HN   = 116 << 20
WS_G    = 120 << 20

class Asm:
    def __init__(self):
        self.lines = []
    def __call__(self, s):
        if isinstance(s, (list, tuple)):
            for x in s: self(x)
        else:
            self.lines.append("    " + s if not s.endswith(":") else s)
    def text(self):
        return "\n".join(self.lines) + "\n"

def srd(a, sd, ptr, nbytes, off=0):
    if off:
        a(f"s_add_u32 s{sd}, s{ptr}, {off}")
        a(f"s_addc_u32 s{sd+1}, s{ptr+1}, 0")
    else:
        a(f"s_mov_b32 s{sd}, s{ptr}")
        a(f"s_mov_b32 s{sd+1}, s{ptr+1}")
    a(f"s_mov_b32 s{sd+2}, {nbytes}")
    a(f"s_mov_b32 s{sd+3}, 0x00020000")

def interleave(mf, fill, lead=1):
    out = []
    n = len(mf)
    if n == 0: return list(fill)
    gaps = n - lead + 1 if n >= lead else 1
    per = [len(fill) // gaps + (1 if i < len(fill) % gaps else 0) for i in range(gaps)]
    fi = 0
    for i, m in enumerate(mf):
        out.append(m)
        g = i - (lead - 1)
        if g >= 0:
            out += fill[fi:fi + per[g]]; fi += per[g]
    out += fill[fi:]
    return out

class Op:
    def __init__(self, kind, T, BK, ld, srd, mf, perm='nat'):
        self.kind, self.T, self.BK, self.ld, self.srd, self.mf, self.perm = kind, T, BK, ld, srd, mf, perm
        self.bytes = T * BK * 2
        self.npieces = self.bytes // 1024
        assert self.bytes % 1024 == 0
        self.rb = BK * 2 if kind == 'kc' else T * 2
        self.cpr = self.rb // 16
        self.kstep = ld * BK if kind == 'tr' else BK * 2
        if kind == 'fr':
            self.fpt = BK // (16 if mf == 32 else 32)
            self.kstep = self.fpt * 1024

class Gemm:
    def __init__(self, a, X, W, WM, WN, WK, nstage, nkt, vbase, sbase, kgroup=1, lds_base=0):
        self.a, self.X, self.W = a, X, W
        self.WM, self.WN, self.WK, self.S, self.nkt = WM, WN, WK, nstage, nkt
        self.NW = WM * WN * WK
        self.mf = X.mf
        self.KS = 16 if self.mf == 32 else 32
        self.BK = X.BK
        self.stage = X.bytes + W.bytes
        self.lds_base = lds_base
        X.lds, W.lds = 0, X.bytes
        self.mt = X.T // WM // self.mf
        self.nt = W.T // WN // self.mf
        self.nks = self.BK // WK // self.KS
        self.kg = kgroup
        assert self.nks % kgroup == 0
        for o in (X, W):
            assert o.npieces % self.NW == 0, (o.npieces, self.NW)
            o.ppw = o.npieces // self.NW
        self.P = X.ppw + W.ppw
        v = vbase
        for o in (X, W):
            o.voff = v; v += o.ppw
        for o, nt in ((X, self.mt), (W, self.nt)):
            if o.kind == 'kc': o.nb = self.nks
            elif o.kind == 'fr': o.nb = 1
            else:
                o.swz = (o.rb % 128 == 0)
                o.nb = min(4, nt) if o.swz else 1
            o.vb = v; v += o.nb
            o.vc = v; v += o.nb
        v = (v + 3) // 4 * 4
        self.fsz = (self.mt + self.nt) * 4 * kgroup
        self.vfrag = v; v += 2 * self.fsz
        self.vend = v
        self.fp = 'v'
        s = sbase
        for o in (X, W):
            o.swave = s; o.skoff = s + 1; s += 2
        self.send = s

    def setup(self, vtid, swave, vt):
        a = self.a
        lane, t1, t2, t3, t4 = vt, vt + 1, vt + 2, vt + 3, vt + 4
        a(f"v_and_b32 v{lane}, 63, v{vtid}")
        for o in (self.X, self.W):
            a(f"s_mul_i32 s{o.swave}, s{swave}, {o.ppw * 1024}")
            if o.kind == 'fr':
                sh = o.fpt.bit_length() - 1; assert 1 << sh == o.fpt
                a(f"v_lshlrev_b32 v{t1}, 4, v{lane}")
                for p in range(o.ppw):
                    st = self.send
                    a(f"s_mul_i32 s{st}, s{swave}, {o.ppw}"); a(f"s_add_u32 s{st}, s{st}, {p}")
                    a(f"s_and_b32 s{st+1}, s{st}, {o.fpt-1}"); a(f"s_lshl_b32 s{st+1}, s{st+1}, 10")
                    a(f"s_lshr_b32 s{st}, s{st}, {sh}"); a(f"s_mul_i32 s{st}, s{st}, {o.ld}"); a(f"s_add_u32 s{st}, s{st}, s{st+1}")
                    a(f"v_add_u32 v{o.voff + p}, s{st}, v{t1}")
                continue
            a(f"s_lshr_b32 s{self.send}, s{o.swave}, 4")
            for p in range(o.ppw):
                a(f"v_add_u32 v{t1}, s{self.send}, v{lane}")
                if p: a(f"v_add_u32 v{t1}, {p * 64}, v{t1}")
                c = o.cpr
                if c & (c - 1) == 0:
                    sh = c.bit_length() - 1
                    a(f"v_lshrrev_b32 v{t2}, {sh}, v{t1}")
                    a(f"v_and_b32 v{t3}, {c - 1}, v{t1}")
                else:
                    magic = (65536 + c - 1) // c
                    assert all((L * magic) >> 16 == L // c for L in range(o.npieces * 64))
                    a(f"v_mul_u32_u24 v{t2}, {magic}, v{t1}")
                    a(f"v_lshrrev_b32 v{t2}, 16, v{t2}")
                    a(f"v_mul_u32_u24 v{t3}, {c}, v{t2}")
                    a(f"v_sub_u32 v{t3}, v{t1}, v{t3}")
                if o.kind == 'kc':
                    sh = {4: 2, 8: 1, 16: 0}[c]
                    a(f"v_lshrrev_b32 v{t4}, {sh}, v{t2}")
                    a(f"v_and_b32 v{t4}, {c - 1}, v{t4}")
                    a(f"v_xor_b32 v{t3}, v{t3}, v{t4}")
                elif o.swz:
                    if self.mf == 32:
                        a(f"v_and_b32 v{t4}, 3, v{t2}")
                        a(f"v_lshlrev_b32 v{t4}, 2, v{t4}")
                    else:
                        assert o.rb == 128
                        a(f"v_and_b32 v{t4}, 6, v{t2}")
                    a(f"v_xor_b32 v{t3}, v{t3}, v{t4}")
                a(f"s_mov_b32 s{self.send+1}, {o.ld}")
                a(f"v_mul_lo_u32 v{t2}, v{t2}, s{self.send+1}")
                a(f"v_lshl_add_u32 v{o.voff + p}, v{t3}, 4, v{t2}")

    def setup_reads(self, vtid, swm, swn, swk, vt):
        a = self.a
        lane, t1, t2, t3, t4 = vt, vt + 1, vt + 2, vt + 3, vt + 4
        st = self.send
        a(f"v_and_b32 v{lane}, 63, v{vtid}")
        for o, sw, nt in ((self.X, swm, self.mt), (self.W, swn, self.nt)):
            mf = self.mf
            sh = 5 if mf == 32 else 4
            if o.kind == 'fr':
                a(f"v_lshlrev_b32 v{t1}, 4, v{lane}")
                a(f"v_add_u32 v{o.vb}, {o.lds + self.lds_base}, v{t1}")
                if sw is not None:
                    a(f"s_mul_i32 s{st}, s{sw}, {nt * o.fpt * 1024}"); a(f"v_add_u32 v{o.vb}, s{st}, v{o.vb}")
                if swk is not None:
                    a(f"s_mul_i32 s{st}, s{swk}, {self.nks * 1024}"); a(f"v_add_u32 v{o.vb}, s{st}, v{o.vb}")
            elif o.kind == 'kc':
                c = o.cpr
                a(f"v_and_b32 v{t1}, {mf - 1}, v{lane}")
                a(f"v_lshrrev_b32 v{t2}, {sh}, v{lane}")
                if swk is not None:
                    a(f"s_mul_i32 s{st}, s{swk}, {self.nks * self.KS // 8}")
                    a(f"v_add_u32 v{t2}, s{st}, v{t2}")
                a(f"v_lshrrev_b32 v{t3}, {({4: 2, 8: 1, 16: 0}[c])}, v{t1}")
                a(f"v_and_b32 v{t3}, {c - 1}, v{t3}")
                if sw is not None:
                    a(f"s_mul_i32 s{st}, s{sw}, {nt * mf}")
                    a(f"v_add_u32 v{t1}, s{st}, v{t1}")
                a(f"v_mul_u32_u24 v{t1}, {o.rb}, v{t1}")
                a(f"v_add_u32 v{t1}, {o.lds + self.lds_base}, v{t1}")
                for ks in range(self.nks):
                    a(f"v_add_u32 v{t4}, {ks * self.KS // 8}, v{t2}")
                    a(f"v_xor_b32 v{t4}, v{t4}, v{t3}")
                    a(f"v_lshl_add_u32 v{o.vb + ks}, v{t4}, 4, v{t1}")
            else:
                a(f"v_bfe_u32 v{t1}, v{lane}, 2, 2")
                a(f"v_lshrrev_b32 v{t2}, {sh}, v{lane}")
                mul = 4 if o.perm == 'perm' else 8
                a(f"v_mad_u32_u24 v{t2}, v{t2}, {mul}, v{t1}")
                if swk is not None:
                    a(f"s_mul_i32 s{st}, s{swk}, {self.nks * self.KS}")
                    a(f"v_add_u32 v{t2}, s{st}, v{t2}")
                a(f"v_mul_u32_u24 v{t3}, {o.rb}, v{t2}")
                a(f"v_and_b32 v{t4}, 3, v{lane}")
                a(f"v_lshl_add_u32 v{t3}, v{t4}, 3, v{t3}")
                if mf == 32:
                    a(f"v_bfe_u32 v{t4}, v{lane}, 4, 1")
                    a(f"v_lshl_add_u32 v{t3}, v{t4}, 5, v{t3}")
                a(f"v_add_u32 v{t3}, {o.lds + self.lds_base}, v{t3}")
                ub = mf * 2
                if o.swz:
                    assert sw is None or nt % 4 == 0 or True
                    if mf == 32: a(f"v_mov_b32 v{t4}, v{t1}")
                    else: a(f"v_bfe_u32 v{t4}, v{t2}, 1, 2")
                    for j in range(o.nb):
                        if sw is not None:
                            a(f"s_mul_i32 s{st}, s{sw}, {nt}")
                            a(f"s_add_u32 s{st}, s{st}, {j}")
                            a(f"v_xor_b32 v{t1}, s{st}, v{t4}")
                        else:
                            a(f"v_xor_b32 v{t1}, {j}, v{t4}")
                        a(f"v_mad_u32_u24 v{o.vb + j}, v{t1}, {ub}, v{t3}")
                else:
                    if sw is not None:
                        a(f"s_mul_i32 s{st}, s{sw}, {nt * ub}")
                        a(f"v_add_u32 v{t3}, s{st}, v{t3}")
                    a(f"v_mov_b32 v{o.vb}, v{t3}")

    def dma(self, kt):
        out = []
        slot = (kt % self.S) * self.stage + self.lds_base
        for o in (self.X, self.W):
            for p in range(o.ppw):
                out.append(f"s_add_u32 m0, s{o.swave}, {slot + o.lds + p * 1024}")
                if p == 0 or True: out.append("s_nop 0")
                out.append(f"buffer_load_dwordx4 v{o.voff + p}, s[{o.srd}:{o.srd+3}], s{o.skoff} offen lds")
            out.append(f"s_add_u32 s{o.skoff}, s{o.skoff}, {o.kstep}")
        return out

    def setcur(self, kt):
        out = []
        slot = (kt % self.S) * self.stage
        for o in (self.X, self.W):
            for j in range(o.nb):
                out.append(f"v_add_u32 v{o.vc + j}, {slot}, v{o.vb + j}")
        return out

    def fragreg(self, buf, which, t, kk):
        base = self.vfrag + buf * self.fsz + kk * (self.mt + self.nt) * 4
        return base + (t if which == 0 else self.mt + t) * 4

    def reads(self, buf, g):
        out = []
        for kk in range(self.kg):
            ks = g * self.kg + kk
            for which, o, nt in ((0, self.X, self.mt), (1, self.W, self.nt)):
                for t in range(nt):
                    r = self.fragreg(buf, which, t, kk)
                    if o.kind == 'fr':
                        out.append(f"ds_read_b128 {self.fp}[{r}:{r+3}], v{o.vc} offset:{(t * o.fpt + ks) * 1024}")
                    elif o.kind == 'kc':
                        out.append(f"ds_read_b128 {self.fp}[{r}:{r+3}], v{o.vc + ks} offset:{t * self.mf * o.rb}")
                    else:
                        ub = self.mf * 2
                        jstep = (self.KS // 2) if o.perm == 'perm' else 4
                        for j in range(2):
                            row = ks * self.KS + j * jstep
                            if o.swz: vb, co = o.vc + (t & 3), (t & ~3) * ub
                            else: vb, co = o.vc, t * ub
                            out.append(f"ds_read_b64_tr_b16 {self.fp}[{r+2*j}:{r+2*j+1}], v{vb} offset:{row * o.rb + co}")
        return out

    def mfmas(self, buf, acc, first, swap):
        out = []
        op = "v_mfma_f32_32x32x16_bf16" if self.mf == 32 else "v_mfma_f32_16x16x32_bf16"
        for kk in range(self.kg):
            for i in range(self.mt):
                for j in range(self.nt):
                    x = self.fragreg(buf, 0, i, kk); w = self.fragreg(buf, 1, j, kk)
                    A, B = (w, x) if swap else (x, w)
                    c = "0" if (first and kk == 0) else acc(i, j)
                    out.append(f"{op} {acc(i, j)}, {self.fp}[{A}:{A+3}], {self.fp}[{B}:{B+3}], {c}")
        return out

    def prologue_dma(self):
        for kt in range(min(self.S, self.nkt)):
            self.a(self.dma(kt))

    def run_prod(self, extra=None):
        a = self.a
        S, P, nkt = self.S, self.P, self.nkt
        nx = len(extra) if extra else 0
        self.prologue_dma()
        a(f"s_waitcnt vmcnt({min(63, (min(S, nkt) - 1) * P)})")
        a("s_barrier")
        for kt in range(nkt - 1):
            issued = min(nkt + nx, kt + S)
            a(f"s_waitcnt vmcnt({min(63, (issued - (kt + 2)) * P)})")
            a("s_barrier")
            if kt + S < nkt: a(self.dma(kt + S))
            elif kt + S < nkt + nx: a(extra[kt + S - nkt])

    def run(self, acc, swap, role='both', tail_fill=None, rpg=2):
        a = self.a
        ng = self.nks // self.kg
        S, P, nkt = self.S, self.P, self.nkt
        both = role == 'both'
        if both: a(f"s_waitcnt vmcnt({min(63, (min(S, nkt) - 1) * P)})")
        a("s_barrier")
        a(self.setcur(0))
        a(self.reads(0, 0))
        buf = 0
        pend = []
        for kt in range(nkt):
            for g in range(ng):
                a("s_waitcnt lgkmcnt(0)")
                fill = []
                if g < ng - 1:
                    fill = self.reads(buf ^ 1, g + 1)
                elif kt < nkt - 1:
                    assert not pend
                    if both: a(f"s_waitcnt vmcnt({min(63, (min(nkt, kt + S) - (kt + 2)) * P)})")
                    a("s_barrier")
                    fill = self.setcur(kt + 1) + self.reads(buf ^ 1, 0)
                    if both and kt + S < nkt:
                        d = self.dma(kt + S); u = []
                        for x in d:
                            if x.startswith("s_add_u32 m0"): u.append([])
                            u[-1].append(x)
                        pend = u
                elif tail_fill: fill = tail_fill
                mf = self.mfmas(buf, acc, kt == 0 and g == 0, swap)
                gaps = [[] for _ in mf]
                for k, x in enumerate(fill): gaps[min(len(mf) - 1, k // rpg)].append(x)
                if pend:
                    left = ng - 1 - g if g < ng - 1 else ng
                    take = -(-len(pend) // left)
                    for k in range(take): gaps[(k * len(mf)) // take + len(mf) // take // 2] += pend[k]
                    pend = pend[take:]
                for m, gp in zip(mf, gaps): a(m); a(gp)
                buf ^= 1
```

```python
from core import *

def wave_sum(a, v, t, sdst):
    for m in ("quad_perm:[1,0,3,2]", "quad_perm:[2,3,0,1]", "row_half_mirror", "row_mirror"):
        a("s_nop 1")
        a(f"v_add_f32_dpp v{v}, v{v}, v{v} {m} row_mask:0xf bank_mask:0xf")
    a("s_nop 1")
    a(f"v_add_f32_dpp v{v}, v{v}, v{v} row_bcast:15 row_mask:0xa bank_mask:0xf")
    a("s_nop 1")
    a(f"v_add_f32_dpp v{v}, v{v}, v{v} row_bcast:31 row_mask:0xc bank_mask:0xf")
    a("s_nop 1")
    a(f"v_readlane_b32 s{sdst}, v{v}, 63")

def layernorm10(a, e, t, st):
    a(f"v_add_f32 v{t}, v{e}, v{e+1}")
    for i in range(2, 10): a(f"v_add_f32 v{t}, v{t}, v{e+i}")
    wave_sum(a, t, t + 1, st)
    a("s_nop 1")
    a(f"v_mov_b32 v{t}, s{st}")
    a(f"v_mul_f32 v{t}, {1.0/640.0!r}, v{t}")
    for i in range(10): a(f"v_sub_f32 v{e+i}, v{e+i}, v{t}")
    a(f"v_mul_f32 v{t}, v{e}, v{e}")
    for i in range(1, 10): a(f"v_fmac_f32 v{t}, v{e+i}, v{e+i}")
    wave_sum(a, t, t + 1, st)
    a("s_nop 1")
    a(f"v_mov_b32 v{t}, s{st}")
    a(f"v_mov_b32 v{t+1}, 0x3727c5ac")
    a(f"v_fmac_f32 v{t+1}, {1.0/640.0!r}, v{t}")
    a(f"v_rsq_f32 v{t+1}, v{t+1}")
    a("s_nop 0")
    for i in range(10): a(f"v_mul_f32 v{e+i}, v{e+i}, v{t+1}")

def unpack5(a, src, e):
    for i in range(5):
        a(f"v_lshlrev_b32 v{e+2*i}, 16, v{src+i}")
        a(f"v_and_b32 v{e+2*i+1}, 0xffff0000, v{src+i}")

def header(a, name):
    a.lines.append(f".globl {name}\n.p2align 8\n.type {name},@function")
    a(f"{name}:")

def desc(name, vgpr, accum, sgpr=102):
    return f""".amdhsa_kernel {name}
  .amdhsa_next_free_vgpr {vgpr}
  .amdhsa_next_free_sgpr {sgpr}
  .amdhsa_accum_offset {accum}
  .amdhsa_group_segment_fixed_size 0
  .amdhsa_kernarg_size 112
  .amdhsa_user_sgpr_count 2
  .amdhsa_user_sgpr_kernarg_segment_ptr 1
  .amdhsa_system_sgpr_workgroup_id_x 1
.end_amdhsa_kernel
"""

def gen_kv():
    a = Asm(); name = "kv_kernel"
    header(a, name)
    a("s_cmp_ge_u32 s2, 256"); a("s_cbranch_scc1 Lkv_end")
    a("s_load_dwordx4 s[4:7], s[0:1], 0")
    a("s_load_dwordx4 s[8:11], s[0:1], 24")
    a("s_load_dwordx2 s[12:13], s[0:1], 104")
    a("v_lshrrev_b32 v1, 6, v0"); a("s_nop 0"); a("v_readfirstlane_b32 s40, v1")
    X = Op('kc', 256, 32, 1024, 16, 32); W = Op('tr', 256, 32, 8192, 20, 32, 'nat')
    g = Gemm(a, X, W, 2, 2, 1, 4, 16, vbase=8, sbase=48)
    a("s_and_b32 s41, s2, 7")
    a("s_lshr_b32 s42, s2, 3")
    a("s_and_b32 s43, s42, 7")
    a("s_lshr_b32 s42, s42, 3")
    a("s_lshr_b32 s44, s42, 1")
    a("s_and_b32 s42, s42, 1")
    a("s_lshl_b32 s41, s41, 1"); a("s_add_u32 s41, s41, s42")
    a("s_lshr_b32 s45, s40, 1")
    a("s_and_b32 s46, s40, 1")
    a(f"s_lshl_b32 s{X.skoff}, s43, 18")
    a(f"s_lshl_b32 s{W.skoff}, s41, 9")
    g.setup(0, 40, 1)
    a("s_waitcnt lgkmcnt(0)")
    srd(a, 16, 6, 2048 * 512 * 2)
    a("s_cmp_eq_u32 s44, 0")
    a("s_cselect_b32 s20, s8, s10"); a("s_cselect_b32 s21, s9, s11")
    a(f"s_mov_b32 s22, {512*4096*2}"); a("s_mov_b32 s23, 0x00020000")
    srd(a, 28, 4, 2048 * 640 * 2)
    srd(a, 32, 12, 2048 * 640 * 2, WS_XN)
    ve = g.vfrag
    a("v_and_b32 v1, 63, v0"); a("v_lshlrev_b32 v1, 2, v1")
    a("s_lshl_b32 s47, s2, 3"); a("s_lshl_b32 s60, s40, 1"); a("s_add_u32 s47, s47, s60"); a("s_mul_i32 s47, s47, 1280")
    for r in range(2):
        for i in range(5):
            a(f"buffer_load_dword v{ve+r*5+i}, v1, s[28:31], s47 offen offset:{r*1280+i*256}")
    g.prologue_dma()
    g.setup_reads(0, 45, 46, None, 2)
    a(f"s_waitcnt vmcnt({g.S*g.P})")
    for r in range(2):
        e = ve + 12
        unpack5(a, ve + r * 5, e)
        layernorm10(a, e, 2, 60)
        for i in range(5):
            a(f"v_cvt_pk_bf16_f32 v{ve+r*5+i}, v{e+2*i}, v{e+2*i+1}")
            a(f"buffer_store_dword v{ve+r*5+i}, v1, s[32:35], s47 offen offset:{r*1280+i*256}")
    a("s_nop 1")
    acc = lambda i, j: f"a[{(i*4+j)*16}:{(i*4+j)*16+15}]"
    a("s_cmp_eq_u32 s44, 1"); a("s_cbranch_scc1 Lkv_v")
    for isv in (0, 1):
        if isv: a("Lkv_v:")
        g.run(acc, swap=(isv == 0))
        srd(a, 24, 12, 2048 * 4096 * 2, WS_VT if isv else WS_K)
        a("v_and_b32 v1, 63, v0"); a("v_lshlrev_b32 v1, 4, v1")
        a("s_lshl_b32 s60, s41, 1"); a("s_add_u32 s60, s60, s46"); a("s_lshl_b32 s60, s60, 19")
        a("s_lshl_b32 s61, s43, 16"); a("s_lshl_b32 s62, s45, 15"); a("s_add_u32 s60, s60, s61"); a("s_add_u32 s60, s60, s62")
        a("s_nop 7"); a("s_nop 7")
        tb = 8
        cnt = 0
        for rt in range(4):
            for ct in range(4):
                i, j = (ct, rt) if isv else (rt, ct)
                b = (i * 4 + j) * 16
                if ct % 2 == 0:
                    off = (ct // 2) * 16384 + rt * 4096 if isv else rt * 8192 + ct * 2048
                    a(f"s_add_u32 s62, s60, {off}")
                for t in range(2):
                    r = tb + (cnt % 4) * 12; cnt += 1
                    for e in range(8): a(f"v_accvgpr_read_b32 v{r+4+e}, a{b+8*t+e}")
                    for e in range(4): a(f"v_cvt_pk_bf16_f32 v{r+e}, v{r+4+2*e}, v{r+5+2*e}")
                    a(f"buffer_store_dwordx4 v[{r}:{r+3}], v1, s[24:27], s62 offen offset:{(ct%2)*2048+t*1024}")
        a("s_endpgm")
    a("Lkv_end:"); a("s_endpgm")
    vg = (g.vend + 3) // 4 * 4
    return a.text(), desc(name, vg + 256, vg), f"; @launch kernel={name} grid=(256,1,1) block=(256,1,1) lds={g.S*g.stage}"
```

```python
import sys, importlib, os, re
sys.path.insert(0, 'gen')
from core import *
import kA
NAME = "sequential_preLN__compressed_kv_cla__mixer_token_mlp__prompt"
def build(gens, path):
    parts = [g() for g in gens]
    if os.environ.get("TL"):
        np_ = []
        for k, p in enumerate(parts):
            t = p[0]
            t = re.sub(r"(\n\w+_kernel:\n)", r"\1    s_memrealtime s[96:97]\n    s_lshl_b32 s100, s2, 3\n    s_add_u32 s100, s100, %d\n" % (k * 65536 + (1 << 19)), t, count=1)
            t = t.replace("    s_endpgm", "\n".join("    " + x for x in ["s_waitcnt vmcnt(0) lgkmcnt(0)", "s_memrealtime s[94:95]", "s_load_dwordx2 s[88:89], s[0:1], 96", "s_waitcnt lgkmcnt(0)",
                "s_mov_b32 s90, 0x100000", "s_mov_b32 s91, 0x20000", "v_mov_b32 v2, s96", "v_mov_b32 v3, s94", "s_mov_b64 exec, 1", "buffer_store_dwordx2 v[2:3], off, s[88:91], s100", "s_endpgm"]))
            np_.append((t, p[1], p[2]))
        parts = np_
    ref = open(f"cdna_kernels/{NAME}.s.ref").read().split("\n")
    hdr = [l for l in ref if l.startswith(";") and "@launch" not in l and "Override" not in l and "grid=ceil" not in l]
    out = "\n".join(hdr) + "\n" + "\n".join(p[2] for p in parts) + "\n"
    out += '.amdgcn_target "amdgcn-amd-amdhsa--gfx950"\n.text\n'
    out += "".join(p[0] for p in parts)
    out += '.section .rodata,"a"\n' + "".join(".p2align 6\n" + p[1] for p in parts)
    open(path, "w").write(out)
if __name__ == "__main__":
    gens = [kA.gen_kv]
    for m, f in (("kB", "gen_attn"), ("kC", "gen_oproj"), ("kC", "gen_ln2"), ("kE", "gen_mlp1"), ("kE", "gen_mlp2")):
        try:
            gens.append(getattr(importlib.import_module(m), f))
        except ImportError as e:
            print("skip", m, e)
    build(gens, sys.argv[1] if len(sys.argv) > 1 else f"cdna_kernels/{NAME}.s")
```

```python
WS_XN   = 0
WS_K    = 4 << 20
WS_VT   = 24 << 20
WS_CTX  = 44 << 20
WS_PART = 64 << 20
WS_H    = 112 << 20
WS_HN   = 116 << 20
WS_G    = 120 << 20

class Asm:
    def __init__(self):
        self.lines = []
    def __call__(self, s):
        if isinstance(s, (list, tuple)):
            for x in s: self(x)
        else:
            self.lines.append("    " + s if not s.endswith(":") else s)
    def text(self):
        return "\n".join(self.lines) + "\n"

def srd(a, sd, ptr, nbytes, off=0):
    if off:
        a(f"s_add_u32 s{sd}, s{ptr}, {off}")
        a(f"s_addc_u32 s{sd+1}, s{ptr+1}, 0")
    else:
        a(f"s_mov_b32 s{sd}, s{ptr}")
        a(f"s_mov_b32 s{sd+1}, s{ptr+1}")
    a(f"s_mov_b32 s{sd+2}, {nbytes}")
    a(f"s_mov_b32 s{sd+3}, 0x00020000")

def interleave(mf, fill, lead=1):
    out = []
    n = len(mf)
    if n == 0: return list(fill)
    gaps = n - lead + 1 if n >= lead else 1
    per = [len(fill) // gaps + (1 if i < len(fill) % gaps else 0) for i in range(gaps)]
    fi = 0
    for i, m in enumerate(mf):
        out.append(m)
        g = i - (lead - 1)
        if g >= 0:
            out += fill[fi:fi + per[g]]; fi += per[g]
    out += fill[fi:]
    return out

import os
PFS = 128
L2PF = os.environ.get("L2PF", "")
def prefetch(a, sd, soff, nbytes_row, nrows, pitch, sslot, nslots, vd, vt, st):
    gpr = nbytes_row // PFS; total = gpr * nrows
    out = []
    for i in range(-(-total // (64 * nslots))):
        o = [f"s_lshl_b32 s{st}, s{sslot}, 6", f"s_add_u32 s{st}, s{st}, {i * nslots * 64}", f"v_add_u32 v{vt+1}, s{st}, v{vt}"]
        if nrows == 1 or pitch == nbytes_row:
            o += [f"v_mul_u32_u24 v{vt+1}, {PFS}, v{vt+1}"]
        else:
            if gpr & (gpr - 1) == 0:
                o += [f"v_lshrrev_b32 v{vt+2}, {gpr.bit_length()-1}, v{vt+1}"]
            else:
                sh = 18; magic = (1 << sh) // gpr + 1
                assert all((G * magic) >> sh == G // gpr for G in range(total + 64 * nslots)) and (total + 64 * nslots) * magic < 1 << 32
                o += [f"v_mul_u32_u24 v{vt+2}, {magic}, v{vt+1}", f"v_lshrrev_b32 v{vt+2}, {sh}, v{vt+2}"]
            o += [f"v_mul_u32_u24 v{vt+1}, {PFS}, v{vt+1}", f"s_mov_b32 s{st}, {pitch - gpr * PFS}", f"v_mad_u32_u24 v{vt+1}, v{vt+2}, s{st}, v{vt+1}"]
        o += [f"buffer_load_dword v{vd}, v{vt+1}, s[{sd}:{sd+3}], {soff} offen"]
        out.append(o)
    return out

def merge(*ls):
    items = []
    for l in ls:
        for i, x in enumerate(l): items.append(((i + 0.5) / len(l), x))
    items.sort(key=lambda t: t[0])
    return [x for _, x in items]

GST = os.environ.get("GST", "")
class Stamps:
    def __init__(self, a, name): self.a, self.on, self.n = a, GST == name, 0
    def __call__(self):
        if self.on: self.a(f"s_memtime s[{66+2*self.n}:{67+2*self.n}]") if self.n < 17 else None; self.n += 1
    def flush(self):
        if not self.on: return
        a = self.a
        a("s_waitcnt vmcnt(0)"); a("s_memtime s[100:101]")
        a("s_load_dwordx2 s[4:5], s[0:1], 96"); a("s_waitcnt lgkmcnt(0)")
        srd(a, 16, 4, 1 << 20)
        for k in range(18): a(f"v_writelane_b32 v1, s{66+2*k}, {k}")
        a("v_lshlrev_b32 v2, 2, v0"); a("s_lshl_b32 s60, s2, 10")
        a("buffer_store_dword v1, v2, s[16:19], s60 offen")

class Op:
    def __init__(self, kind, T, BK, ld, srd, mf, perm='nat'):
        self.kind, self.T, self.BK, self.ld, self.srd, self.mf, self.perm = kind, T, BK, ld, srd, mf, perm
        self.bytes = T * BK * 2
        self.npieces = self.bytes // 1024
        assert self.bytes % 1024 == 0
        self.rb = BK * 2 if kind == 'kc' else T * 2
        self.cpr = self.rb // 16
        self.kstep = ld * BK if kind == 'tr' else BK * 2
        if kind == 'fr':
            self.fpt = BK // (16 if mf == 32 else 32)
            self.kstep = self.fpt * 1024

class Gemm:
    def __init__(self, a, X, W, WM, WN, WK, nstage, nkt, vbase, sbase, kgroup=1, lds_base=0):
        self.a, self.X, self.W = a, X, W
        self.WM, self.WN, self.WK, self.S, self.nkt = WM, WN, WK, nstage, nkt
        self.NW = WM * WN * WK
        self.mf = X.mf
        self.KS = 16 if self.mf == 32 else 32
        self.BK = X.BK
        self.stage = X.bytes + W.bytes
        self.lds_base = lds_base
        X.lds, W.lds = 0, X.bytes
        self.mt = X.T // WM // self.mf
        self.nt = W.T // WN // self.mf
        self.nks = self.BK // WK // self.KS
        self.kg = kgroup
        assert self.nks % kgroup == 0
        for o in (X, W):
            assert o.npieces % self.NW == 0, (o.npieces, self.NW)
            o.ppw = o.npieces // self.NW
        self.P = X.ppw + W.ppw
        v = vbase
        for o in (X, W):
            o.voff = v; v += o.ppw
        for o, nt in ((X, self.mt), (W, self.nt)):
            if o.kind == 'kc': o.nb = self.nks
            elif o.kind == 'fr': o.nb = 1
            else:
                o.swz = (o.rb % 128 == 0)
                o.nb = min(4, nt) if o.swz else 1
            o.vb = v; v += o.nb
            o.vc = v; v += o.nb
        v = (v + 3) // 4 * 4
        self.fsz = (self.mt + self.nt) * 4 * kgroup
        self.vfrag = v; v += 2 * self.fsz
        self.vend = v
        self.fp = 'v'
        s = sbase
        for o in (X, W):
            o.swave = s; o.skoff = s + 1; s += 2
        self.send = s

    def setup(self, vtid, swave, vt):
        a = self.a
        lane, t1, t2, t3, t4 = vt, vt + 1, vt + 2, vt + 3, vt + 4
        a(f"v_and_b32 v{lane}, 63, v{vtid}")
        for o in (self.X, self.W):
            a(f"s_mul_i32 s{o.swave}, s{swave}, {o.ppw * 1024}")
            if o.kind == 'fr':
                sh = o.fpt.bit_length() - 1; assert 1 << sh == o.fpt
                a(f"v_lshlrev_b32 v{t1}, 4, v{lane}")
                for p in range(o.ppw):
                    st = self.send
                    a(f"s_mul_i32 s{st}, s{swave}, {o.ppw}"); a(f"s_add_u32 s{st}, s{st}, {p}")
                    a(f"s_and_b32 s{st+1}, s{st}, {o.fpt-1}"); a(f"s_lshl_b32 s{st+1}, s{st+1}, 10")
                    a(f"s_lshr_b32 s{st}, s{st}, {sh}"); a(f"s_mul_i32 s{st}, s{st}, {o.ld}"); a(f"s_add_u32 s{st}, s{st}, s{st+1}")
                    a(f"v_add_u32 v{o.voff + p}, s{st}, v{t1}")
                continue
            a(f"s_lshr_b32 s{self.send}, s{o.swave}, 4")
            for p in range(o.ppw):
                a(f"v_add_u32 v{t1}, s{self.send}, v{lane}")
                if p: a(f"v_add_u32 v{t1}, {p * 64}, v{t1}")
                c = o.cpr
                if c & (c - 1) == 0:
                    sh = c.bit_length() - 1
                    a(f"v_lshrrev_b32 v{t2}, {sh}, v{t1}")
                    a(f"v_and_b32 v{t3}, {c - 1}, v{t1}")
                else:
                    magic = (65536 + c - 1) // c
                    assert all((L * magic) >> 16 == L // c for L in range(o.npieces * 64))
                    a(f"v_mul_u32_u24 v{t2}, {magic}, v{t1}")
                    a(f"v_lshrrev_b32 v{t2}, 16, v{t2}")
                    a(f"v_mul_u32_u24 v{t3}, {c}, v{t2}")
                    a(f"v_sub_u32 v{t3}, v{t1}, v{t3}")
                if o.kind == 'kc':
                    sh = {4: 2, 8: 1, 16: 0}[c]
                    a(f"v_lshrrev_b32 v{t4}, {sh}, v{t2}")
                    a(f"v_and_b32 v{t4}, {c - 1}, v{t4}")
                    a(f"v_xor_b32 v{t3}, v{t3}, v{t4}")
                elif o.swz:
                    if self.mf == 32:
                        a(f"v_and_b32 v{t4}, 3, v{t2}")
                        a(f"v_lshlrev_b32 v{t4}, 2, v{t4}")
                    else:
                        assert o.rb == 128
                        a(f"v_and_b32 v{t4}, 6, v{t2}")
                    a(f"v_xor_b32 v{t3}, v{t3}, v{t4}")
                a(f"s_mov_b32 s{self.send+1}, {o.ld}")
                a(f"v_mul_lo_u32 v{t2}, v{t2}, s{self.send+1}")
                a(f"v_lshl_add_u32 v{o.voff + p}, v{t3}, 4, v{t2}")

    def setup_reads(self, vtid, swm, swn, swk, vt):
        a = self.a
        lane, t1, t2, t3, t4 = vt, vt + 1, vt + 2, vt + 3, vt + 4
        st = self.send
        a(f"v_and_b32 v{lane}, 63, v{vtid}")
        for o, sw, nt in ((self.X, swm, self.mt), (self.W, swn, self.nt)):
            mf = self.mf
            sh = 5 if mf == 32 else 4
            if o.kind == 'fr':
                a(f"v_lshlrev_b32 v{t1}, 4, v{lane}")
                a(f"v_add_u32 v{o.vb}, {o.lds + self.lds_base}, v{t1}")
                if sw is not None:
                    a(f"s_mul_i32 s{st}, s{sw}, {nt * o.fpt * 1024}"); a(f"v_add_u32 v{o.vb}, s{st}, v{o.vb}")
                if swk is not None:
                    a(f"s_mul_i32 s{st}, s{swk}, {self.nks * 1024}"); a(f"v_add_u32 v{o.vb}, s{st}, v{o.vb}")
            elif o.kind == 'kc':
                c = o.cpr
                a(f"v_and_b32 v{t1}, {mf - 1}, v{lane}")
                a(f"v_lshrrev_b32 v{t2}, {sh}, v{lane}")
                if swk is not None:
                    a(f"s_mul_i32 s{st}, s{swk}, {self.nks * self.KS // 8}")
                    a(f"v_add_u32 v{t2}, s{st}, v{t2}")
                a(f"v_lshrrev_b32 v{t3}, {({4: 2, 8: 1, 16: 0}[c])}, v{t1}")
                a(f"v_and_b32 v{t3}, {c - 1}, v{t3}")
                if sw is not None:
                    a(f"s_mul_i32 s{st}, s{sw}, {nt * mf}")
                    a(f"v_add_u32 v{t1}, s{st}, v{t1}")
                a(f"v_mul_u32_u24 v{t1}, {o.rb}, v{t1}")
                a(f"v_add_u32 v{t1}, {o.lds + self.lds_base}, v{t1}")
                for ks in range(self.nks):
                    a(f"v_add_u32 v{t4}, {ks * self.KS // 8}, v{t2}")
                    a(f"v_xor_b32 v{t4}, v{t4}, v{t3}")
                    a(f"v_lshl_add_u32 v{o.vb + ks}, v{t4}, 4, v{t1}")
            else:
                a(f"v_bfe_u32 v{t1}, v{lane}, 2, 2")
                a(f"v_lshrrev_b32 v{t2}, {sh}, v{lane}")
                mul = 4 if o.perm == 'perm' else 8
                a(f"v_mad_u32_u24 v{t2}, v{t2}, {mul}, v{t1}")
                if swk is not None:
                    a(f"s_mul_i32 s{st}, s{swk}, {self.nks * self.KS}")
                    a(f"v_add_u32 v{t2}, s{st}, v{t2}")
                a(f"v_mul_u32_u24 v{t3}, {o.rb}, v{t2}")
                a(f"v_and_b32 v{t4}, 3, v{lane}")
                a(f"v_lshl_add_u32 v{t3}, v{t4}, 3, v{t3}")
                if mf == 32:
                    a(f"v_bfe_u32 v{t4}, v{lane}, 4, 1")
                    a(f"v_lshl_add_u32 v{t3}, v{t4}, 5, v{t3}")
                a(f"v_add_u32 v{t3}, {o.lds + self.lds_base}, v{t3}")
                ub = mf * 2
                if o.swz:
                    assert sw is None or nt % 4 == 0 or True
                    if mf == 32: a(f"v_mov_b32 v{t4}, v{t1}")
                    else: a(f"v_bfe_u32 v{t4}, v{t2}, 1, 2")
                    for j in range(o.nb):
                        if sw is not None:
                            a(f"s_mul_i32 s{st}, s{sw}, {nt}")
                            a(f"s_add_u32 s{st}, s{st}, {j}")
                            a(f"v_xor_b32 v{t1}, s{st}, v{t4}")
                        else:
                            a(f"v_xor_b32 v{t1}, {j}, v{t4}")
                        a(f"v_mad_u32_u24 v{o.vb + j}, v{t1}, {ub}, v{t3}")
                else:
                    if sw is not None:
                        a(f"s_mul_i32 s{st}, s{sw}, {nt * ub}")
                        a(f"v_add_u32 v{t3}, s{st}, v{t3}")
                    a(f"v_mov_b32 v{o.vb}, v{t3}")

    def dma(self, kt):
        out = []
        slot = (kt % self.S) * self.stage + self.lds_base
        for o in (self.X, self.W):
            for p in range(o.ppw):
                out.append(f"s_add_u32 m0, s{o.swave}, {slot + o.lds + p * 1024}")
                if p == 0 or True: out.append("s_nop 0")
                out.append(f"buffer_load_dwordx4 v{o.voff + p}, s[{o.srd}:{o.srd+3}], s{o.skoff} offen lds")
            out.append(f"s_add_u32 s{o.skoff}, s{o.skoff}, {o.kstep}")
        return out

    def setcur(self, kt):
        out = []
        slot = (kt % self.S) * self.stage
        for o in (self.X, self.W):
            for j in range(o.nb):
                out.append(f"v_add_u32 v{o.vc + j}, {slot}, v{o.vb + j}")
        return out

    def fragreg(self, buf, which, t, kk):
        base = self.vfrag + buf * self.fsz + kk * (self.mt + self.nt) * 4
        return base + (t if which == 0 else self.mt + t) * 4

    def reads(self, buf, g):
        out = []
        for kk in range(self.kg):
            ks = g * self.kg + kk
            for which, o, nt in ((0, self.X, self.mt), (1, self.W, self.nt)):
                for t in range(nt):
                    r = self.fragreg(buf, which, t, kk)
                    if o.kind == 'fr':
                        out.append(f"ds_read_b128 {self.fp}[{r}:{r+3}], v{o.vc} offset:{(t * o.fpt + ks) * 1024}")
                    elif o.kind == 'kc':
                        out.append(f"ds_read_b128 {self.fp}[{r}:{r+3}], v{o.vc + ks} offset:{t * self.mf * o.rb}")
                    else:
                        ub = self.mf * 2
                        jstep = (self.KS // 2) if o.perm == 'perm' else 4
                        for j in range(2):
                            row = ks * self.KS + j * jstep
                            if o.swz: vb, co = o.vc + (t & 3), (t & ~3) * ub
                            else: vb, co = o.vc, t * ub
                            out.append(f"ds_read_b64_tr_b16 {self.fp}[{r+2*j}:{r+2*j+1}], v{vb} offset:{row * o.rb + co}")
        return out

    def mfmas(self, buf, acc, first, swap):
        out = []
        op = "v_mfma_f32_32x32x16_bf16" if self.mf == 32 else "v_mfma_f32_16x16x32_bf16"
        for kk in range(self.kg):
            for i in range(self.mt):
                for j in range(self.nt):
                    x = self.fragreg(buf, 0, i, kk); w = self.fragreg(buf, 1, j, kk)
                    A, B = (w, x) if swap else (x, w)
                    c = "0" if (first and kk == 0) else acc(i, j)
                    out.append(f"{op} {acc(i, j)}, {self.fp}[{A}:{A+3}], {self.fp}[{B}:{B+3}], {c}")
        return out

    def prologue_dma(self):
        for kt in range(min(self.S, self.nkt)):
            self.a(self.dma(kt))

    def run_prod(self, extra=None):
        a = self.a
        S, P, nkt = self.S, self.P, self.nkt
        nx = len(extra) if extra else 0
        self.prologue_dma()
        a(f"s_waitcnt vmcnt({min(63, (min(S, nkt) - 1) * P)})")
        a("s_barrier")
        for kt in range(nkt - 1):
            issued = min(nkt + nx, kt + S)
            a(f"s_waitcnt vmcnt({min(63, (issued - (kt + 2)) * P)})")
            a("s_barrier")
            if kt + S < nkt: a(self.dma(kt + S))
            elif kt + S < nkt + nx: a(extra[kt + S - nkt])

    def run(self, acc, swap, role='both', tail_fill=None, rpg=2, young=0, st=None, every=1, inject=None):
        a = self.a
        ng = self.nks // self.kg
        S, P, nkt = self.S, self.P, self.nkt
        both = role == 'both'
        vmq = [t for t in range(min(S, nkt)) for _ in range(P)] + [-1] * young
        def wait(t):
            n = len(vmq) - 1 - max(i for i, x in enumerate(vmq) if x == t)
            a(f"s_waitcnt vmcnt({min(63, n)})")
        if both: wait(0)
        a("s_barrier")
        if st: st()
        a(self.setcur(0))
        a(self.reads(0, 0))
        buf = 0
        pend = []
        for kt in range(nkt):
            for g in range(ng):
                a("s_waitcnt lgkmcnt(0)")
                fill = []
                if g < ng - 1:
                    fill = self.reads(buf ^ 1, g + 1)
                elif kt < nkt - 1:
                    assert not pend
                    if both: wait(kt + 1)
                    a("s_barrier")
                    if st and kt % every == every - 1: st()
                    fill = self.setcur(kt + 1) + self.reads(buf ^ 1, 0)
                    if both and kt + S < nkt:
                        d = self.dma(kt + S); u = []
                        for x in d:
                            if x.startswith("s_add_u32 m0"): u.append([kt + S])
                            u[-1].append(x)
                        pend = u
                elif tail_fill: fill = tail_fill
                mf = self.mfmas(buf, acc, kt == 0 and g == 0, swap)
                gaps = [[] for _ in mf]
                for k, x in enumerate(fill): gaps[min(len(mf) - 1, k // rpg)].append(x)
                if pend:
                    left = ng - 1 - g if g < ng - 1 else ng
                    take = -(-len(pend) // left)
                    for k in range(take):
                        gaps[(k * len(mf)) // take + len(mf) // take // 2] += pend[k][1:]; vmq.append(pend[k][0])
                    pend = pend[take:]
                if inject and g == 0 and kt in inject:
                    for x in inject[kt]: gaps[-1] += x; vmq.append(-1)
                for m, gp in zip(mf, gaps): a(m); a(gp)
                buf ^= 1
```

```python
from core import *

def wave_sum(a, v, t, sdst):
    for m in ("quad_perm:[1,0,3,2]", "quad_perm:[2,3,0,1]", "row_half_mirror", "row_mirror"):
        a("s_nop 1")
        a(f"v_add_f32_dpp v{v}, v{v}, v{v} {m} row_mask:0xf bank_mask:0xf")
    a("s_nop 1")
    a(f"v_add_f32_dpp v{v}, v{v}, v{v} row_bcast:15 row_mask:0xa bank_mask:0xf")
    a("s_nop 1")
    a(f"v_add_f32_dpp v{v}, v{v}, v{v} row_bcast:31 row_mask:0xc bank_mask:0xf")
    a("s_nop 1")
    a(f"v_readlane_b32 s{sdst}, v{v}, 63")

def layernorm10(a, e, t, st):
    a(f"v_add_f32 v{t}, v{e}, v{e+1}")
    for i in range(2, 10): a(f"v_add_f32 v{t}, v{t}, v{e+i}")
    wave_sum(a, t, t + 1, st)
    a("s_nop 1")
    a(f"v_mov_b32 v{t}, s{st}")
    a(f"v_mul_f32 v{t}, {1.0/640.0!r}, v{t}")
    for i in range(10): a(f"v_sub_f32 v{e+i}, v{e+i}, v{t}")
    a(f"v_mul_f32 v{t}, v{e}, v{e}")
    for i in range(1, 10): a(f"v_fmac_f32 v{t}, v{e+i}, v{e+i}")
    wave_sum(a, t, t + 1, st)
    a("s_nop 1")
    a(f"v_mov_b32 v{t}, s{st}")
    a(f"v_mov_b32 v{t+1}, 0x3727c5ac")
    a(f"v_fmac_f32 v{t+1}, {1.0/640.0!r}, v{t}")
    a(f"v_rsq_f32 v{t+1}, v{t+1}")
    a("s_nop 0")
    for i in range(10): a(f"v_mul_f32 v{e+i}, v{e+i}, v{t+1}")

def unpack5(a, src, e):
    for i in range(5):
        a(f"v_lshlrev_b32 v{e+2*i}, 16, v{src+i}")
        a(f"v_and_b32 v{e+2*i+1}, 0xffff0000, v{src+i}")

def header(a, name):
    a.lines.append(f".globl {name}\n.p2align 8\n.type {name},@function")
    a(f"{name}:")

def desc(name, vgpr, accum, sgpr=102):
    return f""".amdhsa_kernel {name}
  .amdhsa_next_free_vgpr {vgpr}
  .amdhsa_next_free_sgpr {sgpr}
  .amdhsa_accum_offset {accum}
  .amdhsa_group_segment_fixed_size 0
  .amdhsa_kernarg_size 112
  .amdhsa_user_sgpr_count 2
  .amdhsa_user_sgpr_kernarg_segment_ptr 1
  .amdhsa_system_sgpr_workgroup_id_x 1
.end_amdhsa_kernel
"""

def gen_kv():
    a = Asm(); name = "kv_kernel"
    header(a, name)
    a("s_cmp_ge_u32 s2, 256"); a("s_cbranch_scc1 Lkv_end")
    a("s_load_dwordx4 s[4:7], s[0:1], 0")
    a("s_load_dwordx4 s[8:11], s[0:1], 24")
    a("s_load_dwordx2 s[12:13], s[0:1], 104")
    a("s_load_dwordx2 s[14:15], s[0:1], 16")
    a("v_lshrrev_b32 v1, 6, v0"); a("s_nop 0"); a("v_readfirstlane_b32 s40, v1")
    X = Op('kc', 256, 32, 1024, 16, 32); W = Op('tr', 256, 32, 8192, 20, 32, 'nat')
    g = Gemm(a, X, W, 2, 2, 1, 4, 16, vbase=8, sbase=48)
    a("s_and_b32 s41, s2, 7")
    a("s_lshr_b32 s42, s2, 3")
    a("s_and_b32 s43, s42, 7")
    a("s_lshr_b32 s42, s42, 3")
    a("s_lshr_b32 s44, s42, 1")
    a("s_and_b32 s42, s42, 1")
    a("s_lshl_b32 s41, s41, 1"); a("s_add_u32 s41, s41, s42")
    a("s_lshr_b32 s45, s40, 1")
    a("s_and_b32 s46, s40, 1")
    a(f"s_lshl_b32 s{X.skoff}, s43, 18")
    a(f"s_lshl_b32 s{W.skoff}, s41, 9")
    g.setup(0, 40, 1)
    a("s_waitcnt lgkmcnt(0)")
    srd(a, 16, 6, 2048 * 512 * 2)
    a("s_cmp_eq_u32 s44, 0")
    a("s_cselect_b32 s20, s8, s10"); a("s_cselect_b32 s21, s9, s11")
    a(f"s_mov_b32 s22, {512*4096*2}"); a("s_mov_b32 s23, 0x00020000")
    srd(a, 28, 4, 2048 * 640 * 2)
    srd(a, 32, 12, 2048 * 640 * 2, WS_XN)
    ve = g.vfrag
    a("v_and_b32 v1, 63, v0"); a("v_lshlrev_b32 v1, 2, v1")
    a("s_lshl_b32 s47, s2, 3"); a("s_lshl_b32 s60, s40, 1"); a("s_add_u32 s47, s47, s60"); a("s_mul_i32 s47, s47, 1280")
    for r in range(2):
        for i in range(5):
            a(f"buffer_load_dword v{ve+r*5+i}, v1, s[28:31], s47 offen offset:{r*1280+i*256}")
    g.prologue_dma()
    srd(a, 36, 8, 512 * 4096 * 2); srd(a, 64, 10, 512 * 4096 * 2)
    a("s_lshr_b32 s61, s2, 3"); a("s_lshl_b32 s61, s61, 2"); a("s_add_u32 s61, s61, s40")
    a("s_and_b32 s62, s2, 7"); a("s_lshl_b32 s62, s62, 10")
    a("v_and_b32 v2, 63, v0")
    vg = (g.vend + 3) // 4 * 4
    pf = merge(prefetch(a, 16, "0", 2048 * 1024, 1, 0, 61, 128, vg, 2, 60), prefetch(a, 36, "s62", 1024, 512, 8192, 61, 128, vg, 2, 60),
               prefetch(a, 64, "s62", 1024, 512, 8192, 61, 128, vg, 2, 60))
    if "k" not in L2PF: pf = []
    a(pf)
    srd(a, 68, 14, 640 * 4096 * 2)
    a("s_lshl_b32 s72, s2, 2"); a("s_add_u32 s72, s72, s40"); a(f"v_and_b32 v{vg+1}, 63, v0")
    inj = {6: prefetch(a, 68, "0", 640 * 8192, 1, 0, 72, 1024, vg, vg + 1, 73)}
    g.setup_reads(0, 45, 46, None, 2)
    a(f"s_waitcnt vmcnt({g.S*g.P + len(pf)})")
    for r in range(2):
        e = ve + 12
        unpack5(a, ve + r * 5, e)
        layernorm10(a, e, 2, 60)
        for i in range(5):
            a(f"v_cvt_pk_bf16_f32 v{ve+r*5+i}, v{e+2*i}, v{e+2*i+1}")
            a(f"buffer_store_dword v{ve+r*5+i}, v1, s[32:35], s47 offen offset:{r*1280+i*256}")
    a("s_nop 1")
    young = 10 + len(pf)
    acc = lambda i, j: f"a[{(i*4+j)*16}:{(i*4+j)*16+15}]"
    a("s_cmp_eq_u32 s44, 1"); a("s_cbranch_scc1 Lkv_v")
    for isv in (0, 1):
        if isv: a("Lkv_v:")
        g.run(acc, swap=(isv == 0), young=young, inject=inj)
        srd(a, 24, 12, 2048 * 4096 * 2, WS_VT if isv else WS_K)
        a("v_and_b32 v1, 63, v0"); a("v_lshlrev_b32 v1, 4, v1")
        a("s_lshl_b32 s60, s41, 1"); a("s_add_u32 s60, s60, s46"); a("s_lshl_b32 s60, s60, 19")
        a("s_lshl_b32 s61, s43, 16"); a("s_lshl_b32 s62, s45, 15"); a("s_add_u32 s60, s60, s61"); a("s_add_u32 s60, s60, s62")
        a("s_nop 7"); a("s_nop 7")
        tb = 8
        cnt = 0
        for rt in range(4):
            for ct in range(4):
                i, j = (ct, rt) if isv else (rt, ct)
                b = (i * 4 + j) * 16
                if ct % 2 == 0:
                    off = (ct // 2) * 16384 + rt * 4096 if isv else rt * 8192 + ct * 2048
                    a(f"s_add_u32 s62, s60, {off}")
                for t in range(2):
                    r = tb + (cnt % 4) * 12; cnt += 1
                    for e in range(8): a(f"v_accvgpr_read_b32 v{r+4+e}, a{b+8*t+e}")
                    for e in range(4): a(f"v_cvt_pk_bf16_f32 v{r+e}, v{r+4+2*e}, v{r+5+2*e}")
                    a(f"buffer_store_dwordx4 v[{r}:{r+3}], v1, s[24:27], s62 offen offset:{(ct%2)*2048+t*1024}")
        a("s_endpgm")
    a("Lkv_end:"); a("s_endpgm")
    vg += 4
    return a.text(), desc(name, vg + 256, vg), f"; @launch kernel={name} grid=(256,1,1) block=(256,1,1) lds={g.S*g.stage}"
```

```python
WS_XN   = 0
WS_K    = 4 << 20
WS_VT   = 24 << 20
WS_CTX  = 44 << 20
WS_PART = 64 << 20
WS_H    = 112 << 20
WS_HN   = 116 << 20
WS_G    = 120 << 20

class Asm:
    def __init__(self):
        self.lines = []
    def __call__(self, s):
        if isinstance(s, (list, tuple)):
            for x in s: self(x)
        else:
            self.lines.append("    " + s if not s.endswith(":") else s)
    def text(self):
        return "\n".join(self.lines) + "\n"

def srd(a, sd, ptr, nbytes, off=0):
    if off:
        a(f"s_add_u32 s{sd}, s{ptr}, {off}")
        a(f"s_addc_u32 s{sd+1}, s{ptr+1}, 0")
    else:
        a(f"s_mov_b32 s{sd}, s{ptr}")
        a(f"s_mov_b32 s{sd+1}, s{ptr+1}")
    a(f"s_mov_b32 s{sd+2}, {nbytes}")
    a(f"s_mov_b32 s{sd+3}, 0x00020000")

def interleave(mf, fill, lead=1):
    out = []
    n = len(mf)
    if n == 0: return list(fill)
    gaps = n - lead + 1 if n >= lead else 1
    per = [len(fill) // gaps + (1 if i < len(fill) % gaps else 0) for i in range(gaps)]
    fi = 0
    for i, m in enumerate(mf):
        out.append(m)
        g = i - (lead - 1)
        if g >= 0:
            out += fill[fi:fi + per[g]]; fi += per[g]
    out += fill[fi:]
    return out

import os
PFS = 128
L2PF = os.environ.get("L2PF", "")
def prefetch(a, sd, soff, nbytes_row, nrows, pitch, sslot, nslots, vd, vt, st):
    gpr = nbytes_row // PFS; total = gpr * nrows
    out = []
    for i in range(-(-total // (64 * nslots))):
        o = [f"s_lshl_b32 s{st}, s{sslot}, 6", f"s_add_u32 s{st}, s{st}, {i * nslots * 64}", f"v_add_u32 v{vt+1}, s{st}, v{vt}"]
        if nrows == 1 or pitch == nbytes_row:
            o += [f"v_mul_u32_u24 v{vt+1}, {PFS}, v{vt+1}"]
        else:
            if gpr & (gpr - 1) == 0:
                o += [f"v_lshrrev_b32 v{vt+2}, {gpr.bit_length()-1}, v{vt+1}"]
            else:
                sh = 18; magic = (1 << sh) // gpr + 1
                assert all((G * magic) >> sh == G // gpr for G in range(total + 64 * nslots)) and (total + 64 * nslots) * magic < 1 << 32
                o += [f"v_mul_u32_u24 v{vt+2}, {magic}, v{vt+1}", f"v_lshrrev_b32 v{vt+2}, {sh}, v{vt+2}"]
            o += [f"v_mul_u32_u24 v{vt+1}, {PFS}, v{vt+1}", f"s_mov_b32 s{st}, {pitch - gpr * PFS}", f"v_mad_u32_u24 v{vt+1}, v{vt+2}, s{st}, v{vt+1}"]
        o += [f"buffer_load_dword v{vd}, v{vt+1}, s[{sd}:{sd+3}], {soff} offen"]
        out.append(o)
    return out

def merge(*ls):
    items = []
    for l in ls:
        for i, x in enumerate(l): items.append(((i + 0.5) / len(l), x))
    items.sort(key=lambda t: t[0])
    return [x for _, x in items]

GST = os.environ.get("GST", "")
ROT = os.environ.get('ROT', '')
class Stamps:
    def __init__(self, a, name): self.a, self.on, self.n = a, GST == name, 0
    def __call__(self):
        if self.on: self.a(f"s_memtime s[{66+2*self.n}:{67+2*self.n}]") if self.n < 17 else None; self.n += 1
    def flush(self):
        if not self.on: return
        a = self.a
        a("s_waitcnt vmcnt(0)"); a("s_memtime s[100:101]")
        a("s_load_dwordx2 s[4:5], s[0:1], 96"); a("s_waitcnt lgkmcnt(0)")
        srd(a, 16, 4, 1 << 20)
        for k in range(18): a(f"v_writelane_b32 v1, s{66+2*k}, {k}")
        a("v_lshlrev_b32 v2, 2, v0"); a("s_lshl_b32 s60, s2, 10")
        a("buffer_store_dword v1, v2, s[16:19], s60 offen")

class Op:
    def __init__(self, kind, T, BK, ld, srd, mf, perm='nat'):
        self.kind, self.T, self.BK, self.ld, self.srd, self.mf, self.perm = kind, T, BK, ld, srd, mf, perm
        self.bytes = T * BK * 2
        self.npieces = self.bytes // 1024
        assert self.bytes % 1024 == 0
        self.rb = BK * 2 if kind == 'kc' else T * 2
        self.cpr = self.rb // 16
        self.kstep = ld * BK if kind == 'tr' else BK * 2
        if kind == 'fr':
            self.fpt = BK // (16 if mf == 32 else 32)
            self.kstep = self.fpt * 1024

class Gemm:
    def __init__(self, a, X, W, WM, WN, WK, nstage, nkt, vbase, sbase, kgroup=1, lds_base=0):
        self.a, self.X, self.W = a, X, W
        self.WM, self.WN, self.WK, self.S, self.nkt = WM, WN, WK, nstage, nkt
        self.NW = WM * WN * WK
        self.mf = X.mf
        self.KS = 16 if self.mf == 32 else 32
        self.BK = X.BK
        self.stage = X.bytes + W.bytes
        self.lds_base = lds_base
        X.lds, W.lds = 0, X.bytes
        self.mt = X.T // WM // self.mf
        self.nt = W.T // WN // self.mf
        self.nks = self.BK // WK // self.KS
        self.kg = kgroup
        assert self.nks % kgroup == 0
        for o in (X, W):
            assert o.npieces % self.NW == 0, (o.npieces, self.NW)
            o.ppw = o.npieces // self.NW
        self.P = X.ppw + W.ppw
        v = vbase
        for o in (X, W):
            o.voff = v; v += o.ppw
        for o, nt in ((X, self.mt), (W, self.nt)):
            if o.kind == 'kc': o.nb = self.nks
            elif o.kind == 'fr': o.nb = 1
            else:
                o.swz = (o.rb % 128 == 0)
                o.nb = min(4, nt) if o.swz else 1
            o.vb = v; v += o.nb
            o.vc = v; v += o.nb
        v = (v + 3) // 4 * 4
        self.fsz = (self.mt + self.nt) * 4 * kgroup
        self.vfrag = v; v += 2 * self.fsz
        self.vend = v
        self.fp = 'v'; self.srot = None
        s = sbase
        for o in (X, W):
            o.swave = s; o.skoff = s + 1; s += 2
        self.send = s

    def setup(self, vtid, swave, vt):
        a = self.a
        lane, t1, t2, t3, t4 = vt, vt + 1, vt + 2, vt + 3, vt + 4
        a(f"v_and_b32 v{lane}, 63, v{vtid}")
        for o in (self.X, self.W):
            a(f"s_mul_i32 s{o.swave}, s{swave}, {o.ppw * 1024}")
            if o.kind == 'fr':
                sh = o.fpt.bit_length() - 1; assert 1 << sh == o.fpt
                a(f"v_lshlrev_b32 v{t1}, 4, v{lane}")
                for p in range(o.ppw):
                    st = self.send
                    a(f"s_mul_i32 s{st}, s{swave}, {o.ppw}"); a(f"s_add_u32 s{st}, s{st}, {p}")
                    a(f"s_and_b32 s{st+1}, s{st}, {o.fpt-1}"); a(f"s_lshl_b32 s{st+1}, s{st+1}, 10")
                    a(f"s_lshr_b32 s{st}, s{st}, {sh}"); a(f"s_mul_i32 s{st}, s{st}, {o.ld}"); a(f"s_add_u32 s{st}, s{st}, s{st+1}")
                    a(f"v_add_u32 v{o.voff + p}, s{st}, v{t1}")
                continue
            a(f"s_lshr_b32 s{self.send}, s{o.swave}, 4")
            for p in range(o.ppw):
                a(f"v_add_u32 v{t1}, s{self.send}, v{lane}")
                if p: a(f"v_add_u32 v{t1}, {p * 64}, v{t1}")
                c = o.cpr
                if c & (c - 1) == 0:
                    sh = c.bit_length() - 1
                    a(f"v_lshrrev_b32 v{t2}, {sh}, v{t1}")
                    a(f"v_and_b32 v{t3}, {c - 1}, v{t1}")
                else:
                    magic = (65536 + c - 1) // c
                    assert all((L * magic) >> 16 == L // c for L in range(o.npieces * 64))
                    a(f"v_mul_u32_u24 v{t2}, {magic}, v{t1}")
                    a(f"v_lshrrev_b32 v{t2}, 16, v{t2}")
                    a(f"v_mul_u32_u24 v{t3}, {c}, v{t2}")
                    a(f"v_sub_u32 v{t3}, v{t1}, v{t3}")
                if o.kind == 'kc':
                    sh = {4: 2, 8: 1, 16: 0}[c]
                    a(f"v_lshrrev_b32 v{t4}, {sh}, v{t2}")
                    a(f"v_and_b32 v{t4}, {c - 1}, v{t4}")
                    a(f"v_xor_b32 v{t3}, v{t3}, v{t4}")
                elif o.swz:
                    if self.mf == 32:
                        a(f"v_and_b32 v{t4}, 3, v{t2}")
                        a(f"v_lshlrev_b32 v{t4}, 2, v{t4}")
                    else:
                        assert o.rb == 128
                        a(f"v_and_b32 v{t4}, 6, v{t2}")
                    a(f"v_xor_b32 v{t3}, v{t3}, v{t4}")
                a(f"s_mov_b32 s{self.send+1}, {o.ld}")
                a(f"v_mul_lo_u32 v{t2}, v{t2}, s{self.send+1}")
                a(f"v_lshl_add_u32 v{o.voff + p}, v{t3}, 4, v{t2}")

    def setup_reads(self, vtid, swm, swn, swk, vt):
        a = self.a
        lane, t1, t2, t3, t4 = vt, vt + 1, vt + 2, vt + 3, vt + 4
        st = self.send
        a(f"v_and_b32 v{lane}, 63, v{vtid}")
        for o, sw, nt in ((self.X, swm, self.mt), (self.W, swn, self.nt)):
            mf = self.mf
            sh = 5 if mf == 32 else 4
            if o.kind == 'fr':
                a(f"v_lshlrev_b32 v{t1}, 4, v{lane}")
                a(f"v_add_u32 v{o.vb}, {o.lds + self.lds_base}, v{t1}")
                if sw is not None:
                    a(f"s_mul_i32 s{st}, s{sw}, {nt * o.fpt * 1024}"); a(f"v_add_u32 v{o.vb}, s{st}, v{o.vb}")
                if swk is not None:
                    a(f"s_mul_i32 s{st}, s{swk}, {self.nks * 1024}"); a(f"v_add_u32 v{o.vb}, s{st}, v{o.vb}")
            elif o.kind == 'kc':
                c = o.cpr
                a(f"v_and_b32 v{t1}, {mf - 1}, v{lane}")
                a(f"v_lshrrev_b32 v{t2}, {sh}, v{lane}")
                if swk is not None:
                    a(f"s_mul_i32 s{st}, s{swk}, {self.nks * self.KS // 8}")
                    a(f"v_add_u32 v{t2}, s{st}, v{t2}")
                a(f"v_lshrrev_b32 v{t3}, {({4: 2, 8: 1, 16: 0}[c])}, v{t1}")
                a(f"v_and_b32 v{t3}, {c - 1}, v{t3}")
                if sw is not None:
                    a(f"s_mul_i32 s{st}, s{sw}, {nt * mf}")
                    a(f"v_add_u32 v{t1}, s{st}, v{t1}")
                a(f"v_mul_u32_u24 v{t1}, {o.rb}, v{t1}")
                a(f"v_add_u32 v{t1}, {o.lds + self.lds_base}, v{t1}")
                for ks in range(self.nks):
                    a(f"v_add_u32 v{t4}, {ks * self.KS // 8}, v{t2}")
                    a(f"v_xor_b32 v{t4}, v{t4}, v{t3}")
                    a(f"v_lshl_add_u32 v{o.vb + ks}, v{t4}, 4, v{t1}")
            else:
                a(f"v_bfe_u32 v{t1}, v{lane}, 2, 2")
                a(f"v_lshrrev_b32 v{t2}, {sh}, v{lane}")
                mul = 4 if o.perm == 'perm' else 8
                a(f"v_mad_u32_u24 v{t2}, v{t2}, {mul}, v{t1}")
                if swk is not None:
                    a(f"s_mul_i32 s{st}, s{swk}, {self.nks * self.KS}")
                    a(f"v_add_u32 v{t2}, s{st}, v{t2}")
                a(f"v_mul_u32_u24 v{t3}, {o.rb}, v{t2}")
                a(f"v_and_b32 v{t4}, 3, v{lane}")
                a(f"v_lshl_add_u32 v{t3}, v{t4}, 3, v{t3}")
                if mf == 32:
                    a(f"v_bfe_u32 v{t4}, v{lane}, 4, 1")
                    a(f"v_lshl_add_u32 v{t3}, v{t4}, 5, v{t3}")
                a(f"v_add_u32 v{t3}, {o.lds + self.lds_base}, v{t3}")
                ub = mf * 2
                if o.swz:
                    assert sw is None or nt % 4 == 0 or True
                    if mf == 32: a(f"v_mov_b32 v{t4}, v{t1}")
                    else: a(f"v_bfe_u32 v{t4}, v{t2}, 1, 2")
                    for j in range(o.nb):
                        if sw is not None:
                            a(f"s_mul_i32 s{st}, s{sw}, {nt}")
                            a(f"s_add_u32 s{st}, s{st}, {j}")
                            a(f"v_xor_b32 v{t1}, s{st}, v{t4}")
                        else:
                            a(f"v_xor_b32 v{t1}, {j}, v{t4}")
                        a(f"v_mad_u32_u24 v{o.vb + j}, v{t1}, {ub}, v{t3}")
                else:
                    if sw is not None:
                        a(f"s_mul_i32 s{st}, s{sw}, {nt * ub}")
                        a(f"v_add_u32 v{t3}, s{st}, v{t3}")
                    a(f"v_mov_b32 v{o.vb}, v{t3}")

    def dma(self, kt):
        out = []
        slot = (kt % self.S) * self.stage + self.lds_base
        for o in (self.X, self.W):
            for p in range(o.ppw):
                out.append(f"s_add_u32 m0, s{o.swave}, {slot + o.lds + p * 1024}")
                if p == 0 or True: out.append("s_nop 0")
                out.append(f"buffer_load_dwordx4 v{o.voff + p}, s[{o.srd}:{o.srd+3}], s{o.skoff} offen lds")
            out.append(f"s_add_u32 s{o.skoff}, s{o.skoff}, {o.kstep}")
        if self.srot is not None:
            r, t = self.srot, self.send
            out += [f"s_add_u32 s{r}, s{r}, 1", f"s_cmp_eq_u32 s{r}, {self.nkt}", f"s_cselect_b32 s{r}, 0, s{r}",
                    f"s_cselect_b32 s{t}, {self.nkt * self.X.kstep}, 0", f"s_cselect_b32 s{t+1}, {self.nkt * self.W.kstep}, 0",
                    f"s_sub_u32 s{self.X.skoff}, s{self.X.skoff}, s{t}", f"s_sub_u32 s{self.W.skoff}, s{self.W.skoff}, s{t+1}"]
        return out

    def rot_init(self, srot):
        self.srot = srot
        for o in (self.X, self.W):
            self.a(f"s_mul_i32 s{self.send}, s{srot}, {o.kstep}"); self.a(f"s_add_u32 s{o.skoff}, s{o.skoff}, s{self.send}")

    def setcur(self, kt):
        out = []
        slot = (kt % self.S) * self.stage
        for o in (self.X, self.W):
            for j in range(o.nb):
                out.append(f"v_add_u32 v{o.vc + j}, {slot}, v{o.vb + j}")
        return out

    def fragreg(self, buf, which, t, kk):
        base = self.vfrag + buf * self.fsz + kk * (self.mt + self.nt) * 4
        return base + (t if which == 0 else self.mt + t) * 4

    def reads(self, buf, g):
        out = []
        for kk in range(self.kg):
            ks = g * self.kg + kk
            for which, o, nt in ((0, self.X, self.mt), (1, self.W, self.nt)):
                for t in range(nt):
                    r = self.fragreg(buf, which, t, kk)
                    if o.kind == 'fr':
                        out.append(f"ds_read_b128 {self.fp}[{r}:{r+3}], v{o.vc} offset:{(t * o.fpt + ks) * 1024}")
                    elif o.kind == 'kc':
                        out.append(f"ds_read_b128 {self.fp}[{r}:{r+3}], v{o.vc + ks} offset:{t * self.mf * o.rb}")
                    else:
                        ub = self.mf * 2
                        jstep = (self.KS // 2) if o.perm == 'perm' else 4
                        for j in range(2):
                            row = ks * self.KS + j * jstep
                            if o.swz: vb, co = o.vc + (t & 3), (t & ~3) * ub
                            else: vb, co = o.vc, t * ub
                            out.append(f"ds_read_b64_tr_b16 {self.fp}[{r+2*j}:{r+2*j+1}], v{vb} offset:{row * o.rb + co}")
        return out

    def mfmas(self, buf, acc, first, swap):
        out = []
        op = "v_mfma_f32_32x32x16_bf16" if self.mf == 32 else "v_mfma_f32_16x16x32_bf16"
        for kk in range(self.kg):
            for i in range(self.mt):
                for j in range(self.nt):
                    x = self.fragreg(buf, 0, i, kk); w = self.fragreg(buf, 1, j, kk)
                    A, B = (w, x) if swap else (x, w)
                    c = "0" if (first and kk == 0) else acc(i, j)
                    out.append(f"{op} {acc(i, j)}, {self.fp}[{A}:{A+3}], {self.fp}[{B}:{B+3}], {c}")
        return out

    def prologue_dma(self):
        for kt in range(min(self.S, self.nkt)):
            self.a(self.dma(kt))

    def run_prod(self, extra=None):
        a = self.a
        S, P, nkt = self.S, self.P, self.nkt
        nx = len(extra) if extra else 0
        self.prologue_dma()
        a(f"s_waitcnt vmcnt({min(63, (min(S, nkt) - 1) * P)})")
        a("s_barrier")
        for kt in range(nkt - 1):
            issued = min(nkt + nx, kt + S)
            a(f"s_waitcnt vmcnt({min(63, (issued - (kt + 2)) * P)})")
            a("s_barrier")
            if kt + S < nkt: a(self.dma(kt + S))
            elif kt + S < nkt + nx: a(extra[kt + S - nkt])

    def run(self, acc, swap, role='both', tail_fill=None, rpg=2, young=0, st=None, every=1, inject=None):
        a = self.a
        ng = self.nks // self.kg
        S, P, nkt = self.S, self.P, self.nkt
        both = role == 'both'
        vmq = [t for t in range(min(S, nkt)) for _ in range(P)] + [-1] * young
        def wait(t):
            n = len(vmq) - 1 - max(i for i, x in enumerate(vmq) if x == t)
            a(f"s_waitcnt vmcnt({min(63, n)})")
        if both: wait(0)
        a("s_barrier")
        if st: st()
        a(self.setcur(0))
        a(self.reads(0, 0))
        buf = 0
        pend = []
        for kt in range(nkt):
            for g in range(ng):
                a("s_waitcnt lgkmcnt(0)")
                fill = []
                if g < ng - 1:
                    fill = self.reads(buf ^ 1, g + 1)
                elif kt < nkt - 1:
                    assert not pend
                    if both: wait(kt + 1)
                    a("s_barrier")
                    if st and kt % every == every - 1: st()
                    fill = self.setcur(kt + 1) + self.reads(buf ^ 1, 0)
                    if both and kt + S < nkt:
                        d = self.dma(kt + S); u = []
                        for x in d:
                            if x.startswith("s_add_u32 m0"): u.append([kt + S])
                            u[-1].append(x)
                        pend = u
                elif tail_fill: fill = tail_fill
                mf = self.mfmas(buf, acc, kt == 0 and g == 0, swap)
                gaps = [[] for _ in mf]
                for k, x in enumerate(fill): gaps[min(len(mf) - 1, k // rpg)].append(x)
                if pend:
                    left = ng - 1 - g if g < ng - 1 else ng
                    take = -(-len(pend) // left)
                    for k in range(take):
                        gaps[(k * len(mf)) // take + len(mf) // take // 2] += pend[k][1:]; vmq.append(pend[k][0])
                    pend = pend[take:]
                if inject and g == 0 and kt in inject:
                    for x in inject[kt]: gaps[-1] += x; vmq.append(-1)
                for m, gp in zip(mf, gaps): a(m); a(gp)
                buf ^= 1
```

```python
from core import *

def wave_sum(a, v, t, sdst):
    for m in ("quad_perm:[1,0,3,2]", "quad_perm:[2,3,0,1]", "row_half_mirror", "row_mirror"):
        a("s_nop 1")
        a(f"v_add_f32_dpp v{v}, v{v}, v{v} {m} row_mask:0xf bank_mask:0xf")
    a("s_nop 1")
    a(f"v_add_f32_dpp v{v}, v{v}, v{v} row_bcast:15 row_mask:0xa bank_mask:0xf")
    a("s_nop 1")
    a(f"v_add_f32_dpp v{v}, v{v}, v{v} row_bcast:31 row_mask:0xc bank_mask:0xf")
    a("s_nop 1")
    a(f"v_readlane_b32 s{sdst}, v{v}, 63")

def layernorm10(a, e, t, st):
    a(f"v_add_f32 v{t}, v{e}, v{e+1}")
    for i in range(2, 10): a(f"v_add_f32 v{t}, v{t}, v{e+i}")
    wave_sum(a, t, t + 1, st)
    a("s_nop 1")
    a(f"v_mov_b32 v{t}, s{st}")
    a(f"v_mul_f32 v{t}, {1.0/640.0!r}, v{t}")
    for i in range(10): a(f"v_sub_f32 v{e+i}, v{e+i}, v{t}")
    a(f"v_mul_f32 v{t}, v{e}, v{e}")
    for i in range(1, 10): a(f"v_fmac_f32 v{t}, v{e+i}, v{e+i}")
    wave_sum(a, t, t + 1, st)
    a("s_nop 1")
    a(f"v_mov_b32 v{t}, s{st}")
    a(f"v_mov_b32 v{t+1}, 0x3727c5ac")
    a(f"v_fmac_f32 v{t+1}, {1.0/640.0!r}, v{t}")
    a(f"v_rsq_f32 v{t+1}, v{t+1}")
    a("s_nop 0")
    for i in range(10): a(f"v_mul_f32 v{e+i}, v{e+i}, v{t+1}")

def unpack5(a, src, e):
    for i in range(5):
        a(f"v_lshlrev_b32 v{e+2*i}, 16, v{src+i}")
        a(f"v_and_b32 v{e+2*i+1}, 0xffff0000, v{src+i}")

def header(a, name):
    a.lines.append(f".globl {name}\n.p2align 8\n.type {name},@function")
    a(f"{name}:")

def desc(name, vgpr, accum, sgpr=102):
    return f""".amdhsa_kernel {name}
  .amdhsa_next_free_vgpr {vgpr}
  .amdhsa_next_free_sgpr {sgpr}
  .amdhsa_accum_offset {accum}
  .amdhsa_group_segment_fixed_size 0
  .amdhsa_kernarg_size 112
  .amdhsa_user_sgpr_count 2
  .amdhsa_user_sgpr_kernarg_segment_ptr 1
  .amdhsa_system_sgpr_workgroup_id_x 1
.end_amdhsa_kernel
"""

import os
PRE = int(os.environ.get('KPRE', '2')); KC2 = int(os.environ.get('KC2', '8')); KCAP = int(os.environ.get('KCAP', '12'))
KST = os.environ.get('KST', 'sc0 sc1')
KST2 = os.environ.get('KST2', 'sc0 sc1')
KPF = int(os.environ.get('KPF', '27')); KE0 = int(os.environ.get('KE0', '17')); KEN = int(os.environ.get('KEN', '2'))
KBK = int(os.environ.get('KBK', '64')); KROT = int(os.environ.get('KROT', '1')); KROTQ = int(os.environ.get('KROTQ', '0'))
class T(str): pass
def gen_kv():
    a = Asm(); name = "kv_kernel"
    header(a, name)
    a("s_cmp_ge_u32 s2, 256"); a("s_cbranch_scc1 Lkv_end")
    st = Stamps(a, 'kv'); st()
    a("s_load_dwordx4 s[4:7], s[0:1], 0")
    a("s_load_dwordx4 s[8:11], s[0:1], 24")
    a("s_load_dwordx2 s[12:13], s[0:1], 104")
    a("s_load_dwordx2 s[14:15], s[0:1], 16")
    a("v_lshrrev_b32 v1, 6, v0"); a("s_nop 0"); a("v_readfirstlane_b32 s40, v1")
    X = Op('kc', 256, KBK, 1024, 16, 32); W = Op('tr', 128, KBK, 8192, 20, 32, 'nat')
    ng = KBK // 32; S = 6 // ng; NK = 32 // ng; HK = NK // 2
    g = Gemm(a, X, W, 2, 2, 1, S, NK, vbase=8, sbase=48, kgroup=2)
    a("s_and_b32 s41, s2, 7"); a("s_lshr_b32 s42, s2, 3")
    a("s_and_b32 s43, s42, 7")
    a("s_lshr_b32 s42, s42, 3")
    a("s_lshl_b32 s41, s41, 2"); a("s_add_u32 s41, s41, s42")
    a("s_lshr_b32 s45, s40, 1")
    a("s_and_b32 s46, s40, 1")
    a(f"s_lshl_b32 s64, s43, 18")
    a(f"s_lshl_b32 s65, s41, 8")
    a(f"s_mul_i32 s44, s43, {KROT}"); a(f"s_mul_i32 s42, s42, {KROTQ}"); a("s_add_u32 s44, s44, s42")
    g.setup(0, 40, 1)
    a("s_waitcnt lgkmcnt(0)")
    srd(a, 16, 6, 2048 * 512 * 2)
    srd(a, 20, 8, 512 * 4096 * 2)
    def dma(kt):
        W.srd = 20 if kt < HK else 36
        d = [x for x in g.dma(kt) if not x.startswith((f"s_add_u32 s{X.skoff},", f"s_add_u32 s{W.skoff},"))]; u = []
        d = [d[0], f"s_and_b32 s44, s44, {HK-1}", f"s_lshl_b32 s{X.skoff}, s44, {5+ng}", f"s_add_u32 s{X.skoff}, s{X.skoff}, s64",
             f"s_lshl_b32 s{W.skoff}, s44, {17+ng}", f"s_add_u32 s{W.skoff}, s{W.skoff}, s65", "s_add_u32 s44, s44, 1"] + d[2:]
        for x in d:
            if x.startswith("s_add_u32 m0"): u.append([])
            if x.startswith("buffer_"): x = T(x); x.tile = kt
            u[-1].append(x)
        return u
    vmq = []
    def emit(l):
        for x in l:
            a(x)
            if x.startswith("buffer_"): vmq.append(getattr(x, 'tile', -1))
    for u in dma(0): emit(u)
    vx = (g.vend + 3) // 4 * 4
    ve, vt, vad = vx + 10, vx + 20, vx + 22
    vep = vx + 24
    vl16, vpf = vep + 24, vep + 25
    vg = (vpf + 4 + 3) // 4 * 4
    srd(a, 28, 4, 2048 * 640 * 2)
    a(f"v_and_b32 v{vpf+1}, 63, v0"); a(f"v_lshlrev_b32 v{vad}, 2, v{vpf+1}"); a(f"v_lshlrev_b32 v{vl16}, 4, v{vpf+1}")
    a("s_lshl_b32 s47, s2, 3"); a("s_lshl_b32 s60, s40, 1"); a("s_add_u32 s47, s47, s60"); a("s_mul_i32 s47, s47, 1280")
    for kt in range(1, PRE):
        for u in dma(kt): emit(u)
    emit([f"buffer_load_dword v{vx+r*5+i}, v{vad}, s[28:31], s47 offen offset:{r*1280+i*256}" for r in range(2) for i in range(5)])
    xtag = len(vmq)
    srd(a, 32, 12, 2048 * 640 * 2, WS_XN)
    srd(a, 36, 10, 512 * 4096 * 2)
    srd(a, 56, 14, 640 * 4096 * 2)
    srd(a, 24, 12, WS_VT - WS_K + 2048 * 4096 * 2, WS_K)
    a("s_lshl_b32 s54, s2, 2"); a("s_add_u32 s54, s54, s40")
    a("s_lshl_b32 s60, s41, 19"); a("s_lshl_b32 s61, s43, 16"); a("s_add_u32 s60, s60, s61"); a("s_lshl_b32 s61, s45, 15"); a("s_add_u32 s60, s60, s61")
    a("s_lshl_b32 s61, s46, 12"); a("s_add_u32 s61, s61, s60")
    a("s_lshl_b32 s62, s46, 13"); a("s_add_u32 s62, s62, s60"); a(f"s_add_u32 s62, s62, {WS_VT - WS_K}")
    g.setup_reads(0, 45, 46, None, 2)
    ln = Asm()
    for r in range(2):
        unpack5(ln, vx + r * 5, ve)
        layernorm10(ln, ve, vt, 60)
        for i in range(5):
            ln(f"v_cvt_pk_bf16_f32 v{vx+r*5+i}, v{ve+2*i}, v{ve+2*i+1}")
            ln(f"buffer_store_dword v{vx+r*5+i}, v{vad}, s[32:35], s47 offen offset:{r*1280+i*256}")
    ln = [x.strip() for x in ln.lines]
    acc = lambda p: (lambda i, j: f"a[{p*128+(i*2+j)*16}:{p*128+(i*2+j)*16+15}]")
    def epi(p):
        out = []; cnt = 0
        for i in range(4):
            for j in range(2):
                for t in range(2):
                    b = p * 128 + (i * 2 + j) * 16 + 8 * t; r = vep + (cnt % 2) * 12; cnt += 1
                    o = []
                    if p == 0:
                        if j == 0 and t == 0: o.append(f"s_add_u32 s63, s61, {i*8192}")
                        off = j * 2048 + t * 1024
                    else:
                        if t == 0: o.append(f"s_add_u32 s63, s62, {(i//2)*16384 + j*4096}")
                        off = (i % 2) * 2048 + t * 1024
                    o += [f"v_accvgpr_read_b32 v{r+4+e}, a{b+e}" for e in range(8)]
                    o += [f"v_cvt_pk_bf16_f32 v{r+e}, v{r+4+2*e}, v{r+5+2*e}" for e in range(4)]
                    o += [f"buffer_store_dwordx4 v[{r}:{r+3}], v{vl16}, s[24:27], s63 offen offset:{off} {KST2 if p else KST}".rstrip()]
                    out.append(o)
        return out
    inj = {}
    LN0, LNN = 3, 6
    for k in range(LNN): inj[LN0 + k] = ln[k * len(ln) // LNN:(k + 1) * len(ln) // LNN]
    e0 = epi(0)
    for k in range(16 // KEN): inj[KE0 + k] = sum(e0[k * KEN:(k + 1) * KEN], [])
    inj[KPF] = inj.get(KPF, []) + sum(prefetch(a, 56, "0", 640 * 8192, 1, 0, 54, 1024, vpf, vpf + 1, 55), [])
    def wait(t, idx=None):
        n = len(vmq) - 1 - max(i for i, x in enumerate(vmq) if x == t)
        assert sum(x == t for x in vmq) == g.P
        if idx is not None: n = min(n, len(vmq) - idx)
        a(f"s_waitcnt vmcnt({min(63, n)})")
    pend = [u for kt in range(PRE, S) for u in dma(kt)]
    st()
    wait(0); a("s_barrier"); st()
    a(g.setcur(0)); a(g.reads(0, 0))
    buf = 0
    for G in range(32):
        kt, gi = G // ng, G % ng
        a("s_waitcnt lgkmcnt(0)")
        fill = []
        if gi < ng - 1: fill = g.reads(buf ^ 1, gi + 1)
        elif kt < NK - 1:
            wait(kt + 1, xtag if G == LN0 else None); a("s_barrier")
            if G % 4 == 3: st()
            fill = g.setcur(kt + 1) + g.reads(buf ^ 1, 0)
            if kt + S < NK: pend += dma(kt + S)
        p = G // 16
        mf = g.mfmas(buf, acc(p), G % 16 == 0, p == 0)
        gaps = [[] for _ in mf]
        for k, x in enumerate(fill): gaps[min(15, k // 3)].append(x)
        take = min(KCAP if len(pend) > g.P else KC2, len(pend))
        for k in range(take): gaps[(k * 16) // take + 16 // take // 2] += pend[k]
        pend = pend[take:]
        l = inj.get(G, [])
        for k, x in enumerate(l): gaps[4 + k * 12 // len(l)].append(x)
        for m, gp in zip(mf, gaps): a(m); emit(gp)
        buf ^= 1
    st()
    a("s_nop 7"); a("s_nop 7")
    for o in epi(1): a(o)
    st(); st.flush()
    a("s_waitcnt vmcnt(0)")
    a("Lkv_end:"); a("s_endpgm")
    return a.text(), desc(name, vg + 256, vg), f"; @launch kernel={name} grid=(256,1,1) block=(256,1,1) lds={g.S*g.stage}"
```

```python
import sys, importlib, os, re
sys.path.insert(0, 'gen')
from core import *
import kA
NAME = "sequential_preLN__compressed_kv_cla__mixer_token_mlp__prompt"
def build(gens, path):
    parts = [g() for g in gens]
    WT = os.environ.get("WT", "1"); WP = os.environ.get("WP", "sc0 sc1")
    parts = [(re.sub(r"(buffer_store_\w+ [^\n]*)", r"\1 " + WP, p[0]), p[1], p[2]) if str(k) in WT else p for k, p in enumerate(parts)]
    if os.environ.get("TL"):
        np_ = []
        for k, p in enumerate(parts):
            t = p[0]
            t = re.sub(r"(\n\w+_kernel:\n)", r"\1    s_memrealtime s[96:97]\n    s_lshl_b32 s100, s2, 3\n    s_add_u32 s100, s100, %d\n" % (k * 65536 + (1 << 19)), t, count=1)
            t = t.replace("    s_endpgm", "\n".join("    " + x for x in ["s_waitcnt vmcnt(0) lgkmcnt(0)", "s_memrealtime s[94:95]", "s_load_dwordx2 s[88:89], s[0:1], 96", "s_waitcnt lgkmcnt(0)",
                "s_mov_b32 s90, 0x100000", "s_mov_b32 s91, 0x20000", "v_mov_b32 v2, s96", "v_mov_b32 v3, s94", "s_mov_b64 exec, 1", "buffer_store_dwordx2 v[2:3], off, s[88:91], s100", "s_endpgm"]))
            np_.append((t, p[1], p[2]))
        parts = np_
    ref = open(f"cdna_kernels/{NAME}.s.ref").read().split("\n")
    hdr = [l for l in ref if l.startswith(";") and "@launch" not in l and "Override" not in l and "grid=ceil" not in l]
    out = "\n".join(hdr) + "\n" + "\n".join(p[2] for p in parts) + "\n"
    out += '.amdgcn_target "amdgcn-amd-amdhsa--gfx950"\n.text\n'
    out += "".join(p[0] for p in parts)
    out += '.section .rodata,"a"\n' + "".join(".p2align 6\n" + p[1] for p in parts)
    if os.environ.get("ALIGN", "0") == "1":
        import align; out = align.align(out)
    open(path, "w").write(out)
if __name__ == "__main__":
    gens = [kA.gen_kv]
    for m, f in (("kB", "gen_attn"), ("kC", "gen_oproj"), ("kC", "gen_ln2"), ("kE", "gen_mlp1"), ("kE", "gen_mlp2")):
        try:
            gens.append(getattr(importlib.import_module(m), f))
        except ImportError as e:
            print("skip", m, e)
    build(gens, sys.argv[1] if len(sys.argv) > 1 else f"cdna_kernels/{NAME}.s")
```

```python
from core import *

def wave_sum(a, v, t, sdst):
    for m in ("quad_perm:[1,0,3,2]", "quad_perm:[2,3,0,1]", "row_half_mirror", "row_mirror"):
        a("s_nop 1")
        a(f"v_add_f32_dpp v{v}, v{v}, v{v} {m} row_mask:0xf bank_mask:0xf")
    a("s_nop 1")
    a(f"v_add_f32_dpp v{v}, v{v}, v{v} row_bcast:15 row_mask:0xa bank_mask:0xf")
    a("s_nop 1")
    a(f"v_add_f32_dpp v{v}, v{v}, v{v} row_bcast:31 row_mask:0xc bank_mask:0xf")
    a("s_nop 1")
    a(f"v_readlane_b32 s{sdst}, v{v}, 63")

def layernorm10(a, e, t, st):
    a(f"v_add_f32 v{t}, v{e}, v{e+1}")
    for i in range(2, 10): a(f"v_add_f32 v{t}, v{t}, v{e+i}")
    wave_sum(a, t, t + 1, st)
    a("s_nop 1")
    a(f"v_mov_b32 v{t}, s{st}")
    a(f"v_mul_f32 v{t}, {1.0/640.0!r}, v{t}")
    for i in range(10): a(f"v_sub_f32 v{e+i}, v{e+i}, v{t}")
    a(f"v_mul_f32 v{t}, v{e}, v{e}")
    for i in range(1, 10): a(f"v_fmac_f32 v{t}, v{e+i}, v{e+i}")
    wave_sum(a, t, t + 1, st)
    a("s_nop 1")
    a(f"v_mov_b32 v{t}, s{st}")
    a(f"v_mov_b32 v{t+1}, 0x3727c5ac")
    a(f"v_fmac_f32 v{t+1}, {1.0/640.0!r}, v{t}")
    a(f"v_rsq_f32 v{t+1}, v{t+1}")
    a("s_nop 0")
    for i in range(10): a(f"v_mul_f32 v{e+i}, v{e+i}, v{t+1}")

def unpack5(a, src, e):
    for i in range(5):
        a(f"v_lshlrev_b32 v{e+2*i}, 16, v{src+i}")
        a(f"v_and_b32 v{e+2*i+1}, 0xffff0000, v{src+i}")

def header(a, name):
    a.lines.append(f".globl {name}\n.p2align 8\n.type {name},@function")
    a(f"{name}:")

def desc(name, vgpr, accum, sgpr=102):
    return f""".amdhsa_kernel {name}
  .amdhsa_next_free_vgpr {vgpr}
  .amdhsa_next_free_sgpr {sgpr}
  .amdhsa_accum_offset {accum}
  .amdhsa_group_segment_fixed_size 0
  .amdhsa_kernarg_size 112
  .amdhsa_user_sgpr_count 2
  .amdhsa_user_sgpr_kernarg_segment_ptr 1
  .amdhsa_system_sgpr_workgroup_id_x 1
.end_amdhsa_kernel
"""

import os
PRE = int(os.environ.get('KPRE', '2')); KC2 = int(os.environ.get('KC2', '8')); KCAP = int(os.environ.get('KCAP', '12'))
KST = os.environ.get('KST', 'sc0 sc1')
KST2 = os.environ.get('KST2', 'sc0 sc1')
KPF = int(os.environ.get('KPF', '27')); KE0 = int(os.environ.get('KE0', '17')); KEN = int(os.environ.get('KEN', '2'))
KBK = int(os.environ.get('KBK', '64')); KROT = int(os.environ.get('KROT', '1')); KROTQ = int(os.environ.get('KROTQ', '0'))
KMAP = int(os.environ.get('KMAP', '0'))
class T(str): pass
def gen_kv():
    a = Asm(); name = "kv_kernel"
    header(a, name)
    a("s_cmp_ge_u32 s2, 256"); a("s_cbranch_scc1 Lkv_end")
    st = Stamps(a, 'kv'); st()
    a("s_load_dwordx4 s[4:7], s[0:1], 0")
    a("s_load_dwordx4 s[8:11], s[0:1], 24")
    a("s_load_dwordx2 s[12:13], s[0:1], 104")
    a("s_load_dwordx2 s[14:15], s[0:1], 16")
    a("v_lshrrev_b32 v1, 6, v0"); a("s_nop 0"); a("v_readfirstlane_b32 s40, v1")
    X = Op('kc', 256, KBK, 1024, 16, 32); W = Op('tr', 128, KBK, 8192, 20, 32, 'nat')
    ng = KBK // 32; S = 6 // ng; NK = 32 // ng; HK = NK // 2
    g = Gemm(a, X, W, 2, 2, 1, S, NK, vbase=8, sbase=48, kgroup=2)
    a("s_and_b32 s41, s2, 7"); a("s_lshr_b32 s42, s2, 3")
    if KMAP:
        a("s_and_b32 s43, s42, 3"); a("s_and_b32 s44, s41, 1"); a("s_lshl_b32 s44, s44, 2"); a("s_add_u32 s43, s43, s44")
        a("s_lshr_b32 s42, s42, 2"); a("s_lshr_b32 s41, s41, 1"); a("s_lshl_b32 s41, s41, 3"); a("s_add_u32 s41, s41, s42")
    else:
        a("s_and_b32 s43, s42, 7")
        a("s_lshr_b32 s42, s42, 3")
        a("s_lshl_b32 s41, s41, 2"); a("s_add_u32 s41, s41, s42")
    a("s_lshr_b32 s45, s40, 1")
    a("s_and_b32 s46, s40, 1")
    a(f"s_lshl_b32 s64, s43, 18")
    a(f"s_lshl_b32 s65, s41, 8")
    a(f"s_mul_i32 s44, s43, {KROT}"); a(f"s_mul_i32 s42, s42, {KROTQ}"); a("s_add_u32 s44, s44, s42")
    g.setup(0, 40, 1)
    a("s_waitcnt lgkmcnt(0)")
    srd(a, 16, 6, 2048 * 512 * 2)
    srd(a, 20, 8, 512 * 4096 * 2)
    def dma(kt):
        W.srd = 20 if kt < HK else 36
        d = [x for x in g.dma(kt) if not x.startswith((f"s_add_u32 s{X.skoff},", f"s_add_u32 s{W.skoff},"))]; u = []
        d = [d[0], f"s_and_b32 s44, s44, {HK-1}", f"s_lshl_b32 s{X.skoff}, s44, {5+ng}", f"s_add_u32 s{X.skoff}, s{X.skoff}, s64",
             f"s_lshl_b32 s{W.skoff}, s44, {17+ng}", f"s_add_u32 s{W.skoff}, s{W.skoff}, s65", "s_add_u32 s44, s44, 1"] + d[2:]
        for x in d:
            if x.startswith("s_add_u32 m0"): u.append([])
            if x.startswith("buffer_"): x = T(x); x.tile = kt
            u[-1].append(x)
        return u
    vmq = []
    def emit(l):
        for x in l:
            a(x)
            if x.startswith("buffer_"): vmq.append(getattr(x, 'tile', -1))
    for u in dma(0): emit(u)
    vx = (g.vend + 3) // 4 * 4
    ve, vt, vad = vx + 10, vx + 20, vx + 22
    vep = vx + 24
    vl16, vpf = vep + 24, vep + 25
    vk16 = vpf + 4
    vg = (vpf + 5 + 3) // 4 * 4
    srd(a, 28, 4, 2048 * 640 * 2)
    a(f"v_and_b32 v{vpf+1}, 63, v0"); a(f"v_lshlrev_b32 v{vad}, 2, v{vpf+1}"); a(f"v_lshlrev_b32 v{vl16}, 4, v{vpf+1}")
    a(f"v_and_b32 v{vk16}, 0x270, v{vl16}"); a(f"v_and_b32 v2, 0x80, v{vl16}"); a(f"v_lshl_add_u32 v{vk16}, v2, 1, v{vk16}")
    a(f"v_and_b32 v2, 0x100, v{vl16}"); a("v_lshrrev_b32 v2, 1, v2"); a(f"v_add_u32 v{vk16}, v2, v{vk16}")
    a("s_lshl_b32 s47, s2, 3"); a("s_lshl_b32 s60, s40, 1"); a("s_add_u32 s47, s47, s60"); a("s_mul_i32 s47, s47, 1280")
    for kt in range(1, PRE):
        for u in dma(kt): emit(u)
    emit([f"buffer_load_dword v{vx+r*5+i}, v{vad}, s[28:31], s47 offen offset:{r*1280+i*256}" for r in range(2) for i in range(5)])
    xtag = len(vmq)
    srd(a, 32, 12, 2048 * 640 * 2, WS_XN)
    srd(a, 36, 10, 512 * 4096 * 2)
    srd(a, 56, 14, 640 * 4096 * 2)
    srd(a, 24, 12, WS_VT - WS_K + 2048 * 4096 * 2, WS_K)
    a("s_lshl_b32 s54, s2, 2"); a("s_add_u32 s54, s54, s40")
    a("s_lshl_b32 s60, s41, 19"); a("s_lshl_b32 s61, s43, 16"); a("s_add_u32 s60, s60, s61"); a("s_lshl_b32 s61, s45, 15"); a("s_add_u32 s60, s60, s61")
    a("s_lshl_b32 s61, s46, 12"); a("s_add_u32 s61, s61, s60")
    a("s_lshl_b32 s62, s46, 13"); a("s_add_u32 s62, s62, s60"); a(f"s_add_u32 s62, s62, {WS_VT - WS_K}")
    g.setup_reads(0, 45, 46, None, 2)
    ln = Asm()
    for r in range(2):
        unpack5(ln, vx + r * 5, ve)
        layernorm10(ln, ve, vt, 60)
        for i in range(5):
            ln(f"v_cvt_pk_bf16_f32 v{vx+r*5+i}, v{ve+2*i}, v{ve+2*i+1}")
            ln(f"buffer_store_dword v{vx+r*5+i}, v{vad}, s[32:35], s47 offen offset:{r*1280+i*256}")
    ln = [x.strip() for x in ln.lines]
    acc = lambda p: (lambda i, j: f"a[{p*128+(i*2+j)*16}:{p*128+(i*2+j)*16+15}]")
    def epi(p):
        out = []; cnt = 0
        for i in range(4):
            for j in range(2):
                for t in range(2):
                    b = p * 128 + (i * 2 + j) * 16 + 8 * t; r = vep + (cnt % 2) * 12; cnt += 1
                    o = []
                    if p == 0:
                        if j == 0 and t == 0: o.append(f"s_add_u32 s63, s61, {i*8192}")
                        off = j * 2048 + t * 1024
                    else:
                        if t == 0: o.append(f"s_add_u32 s63, s62, {(i//2)*16384 + j*4096}")
                        off = (i % 2) * 2048 + t * 1024
                    o += [f"v_accvgpr_read_b32 v{r+4+e}, a{b+e}" for e in range(8)]
                    o += [f"v_cvt_pk_bf16_f32 v{r+e}, v{r+4+2*e}, v{r+5+2*e}" for e in range(4)]
                    o += [f"buffer_store_dwordx4 v[{r}:{r+3}], v{vl16 if p else vk16}, s[24:27], s63 offen offset:{off} {KST2 if p else KST}".rstrip()]
                    out.append(o)
        return out
    inj = {}
    LN0, LNN = 3, 6
    for k in range(LNN): inj[LN0 + k] = ln[k * len(ln) // LNN:(k + 1) * len(ln) // LNN]
    e0 = epi(0)
    for k in range(16 // KEN): inj[KE0 + k] = sum(e0[k * KEN:(k + 1) * KEN], [])
    inj[KPF] = inj.get(KPF, []) + sum(prefetch(a, 56, "0", 640 * 8192, 1, 0, 54, 1024, vpf, vpf + 1, 55), [])
    def wait(t, idx=None):
        n = len(vmq) - 1 - max(i for i, x in enumerate(vmq) if x == t)
        assert sum(x == t for x in vmq) == g.P
        if idx is not None: n = min(n, len(vmq) - idx)
        a(f"s_waitcnt vmcnt({min(63, n)})")
    pend = [u for kt in range(PRE, S) for u in dma(kt)]
    st()
    wait(0); a("s_barrier"); st()
    a(g.setcur(0)); a(g.reads(0, 0))
    buf = 0
    for G in range(32):
        kt, gi = G // ng, G % ng
        a("s_waitcnt lgkmcnt(0)")
        fill = []
        if gi < ng - 1: fill = g.reads(buf ^ 1, gi + 1)
        elif kt < NK - 1:
            wait(kt + 1, xtag if G == LN0 else None); a("s_barrier")
            if G % 4 == 3: st()
            fill = g.setcur(kt + 1) + g.reads(buf ^ 1, 0)
            if kt + S < NK: pend += dma(kt + S)
        p = G // 16
        mf = g.mfmas(buf, acc(p), G % 16 == 0, p == 0)
        gaps = [[] for _ in mf]
        for k, x in enumerate(fill): gaps[min(15, k // 3)].append(x)
        take = min(KCAP if len(pend) > g.P else KC2, len(pend))
        for k in range(take): gaps[(k * 16) // take + 16 // take // 2] += pend[k]
        pend = pend[take:]
        l = inj.get(G, [])
        for k, x in enumerate(l): gaps[4 + k * 12 // len(l)].append(x)
        for m, gp in zip(mf, gaps): a(m); emit(gp)
        buf ^= 1
    st()
    a("s_nop 7"); a("s_nop 7")
    for o in epi(1): a(o)
    st(); st.flush()
    a("s_waitcnt vmcnt(0)")
    a("Lkv_end:"); a("s_endpgm")
    return a.text(), desc(name, vg + 256, vg), f"; @launch kernel={name} grid=(256,1,1) block=(256,1,1) lds={g.S*g.stage}"
```
